```python
import torch

def _softmax(x, axis=-1):
    return torch.softmax(x, dim=axis)
def _gelu(x):
    return torch.nn.functional.gelu(x, approximate="tanh")
def _silu(x):
    return torch.nn.functional.silu(x)
def _sigmoid(x):
    return torch.sigmoid(x)
def _layernorm(x, axis=-1, eps=1e-5):
    m = x.mean(dim=axis, keepdim=True)
    v = x.var(dim=axis, keepdim=True, unbiased=False)
    return (x - m) / torch.sqrt(v + eps)
def _scatter_add(tgt, idx, src, axis=0):
    return tgt.clone().index_add_(axis, idx, src)
def _segment_sum(src, seg, n):
    out = torch.zeros((n,) + src.shape[1:], dtype=src.dtype)
    return out.index_add_(0, seg, src)
def _pad(x, pw):
    flat = tuple(v for pair in reversed(pw) for v in pair)
    return torch.nn.functional.pad(x, flat)

kernel_name = 'standalone__weight_only_int_quip__sampling'

def setup_inputs():

    _w = (lambda a: (lambda t: t.to(torch.bfloat16) if t.is_floating_point() else t)(torch.as_tensor(a)))
    B, S, D, F = 32, 8, 1024, 3584
    G = 64 if 64 > 0 else D
    D = (D // G) * G
    ng = D // G
    bits = 4 if 4 > 0 else 4
    qmax = 1 << bits
    qw = torch.randint(0, qmax, (D, F)).to(torch.int32)
    U, _ = (lambda *_a, **_k: torch.linalg.qr(*[torch.as_tensor(_x).float() for _x in _a], **_k))((lambda *s: torch.randn(*s, dtype=torch.bfloat16) * 0.05)(D, D))
    V, _ = (lambda *_a, **_k: torch.linalg.qr(*[torch.as_tensor(_x).float() for _x in _a], **_k))((lambda *s: torch.randn(*s, dtype=torch.bfloat16) * 0.05)(F, F))
    return {
        "x": _w((lambda *s: torch.randn(*s, dtype=torch.bfloat16) * 0.05)(B, S, D)),
        "qw": _w(qw),
        "scales": _w(torch.abs((lambda *s: torch.randn(*s, dtype=torch.bfloat16) * 0.05)(ng, F)) * 0.02 + 0.005),
        "zeros": _w(torch.full((ng, F), qmax / 2.0, dtype=float)),
        "U": _w(U.to(float)),
        "V": _w(V.to(float)),
    }

def reference(x, qw, scales, zeros, U, V):
    B, S, D = x.shape
    ng, F = scales.shape
    G = D // ng
    s = (lambda x, n, axis: torch.repeat_interleave(x, n, dim=axis))(scales, G, axis=0)
    z = (lambda x, n, axis: torch.repeat_interleave(x, n, dim=axis))(zeros, G, axis=0)
    wq = ((lambda x, dt: x.to(dt))(qw, x.dtype) - z) * s
    xr = torch.einsum("bsd,de->bse", x, U)
    h  = torch.einsum("bse,ef->bsf", xr, wq)
    y  = torch.einsum("bsf,fg->bsg", h, V)
    return y
```

```python
import sys
NAME = "standalone__weight_only_int_quip__sampling"
XR_OFF = 0
H_OFF = 1 << 20
class Asm:
    def __init__(self): self.L = []
    def __call__(self, s): self.L.append(s)
    def text(self): return "\n".join(self.L) + "\n"

def srd(A, d, b, nbytes):
    A(f"s_mov_b32 s{d}, s{b}"); A(f"s_mov_b32 s{d+1}, s{b+1}"); A(f"s_mov_b32 s{d+2}, {nbytes}"); A(f"s_mov_b32 s{d+3}, 0x20000")

def kd(A, name, vgpr, acc_off, sgpr=96):
    A('.section .rodata,"a"'); A(".p2align 6"); A(f".amdhsa_kernel {name}")
    A(f"  .amdhsa_next_free_vgpr {vgpr}"); A(f"  .amdhsa_next_free_sgpr {sgpr}"); A(f"  .amdhsa_accum_offset {acc_off}")
    A("  .amdhsa_group_segment_fixed_size 0"); A("  .amdhsa_kernarg_size 72"); A("  .amdhsa_user_sgpr_count 2")
    A("  .amdhsa_user_sgpr_kernarg_segment_ptr 1"); A("  .amdhsa_system_sgpr_workgroup_id_x 1"); A(".end_amdhsa_kernel")
    A(".text")

def head(A, name, nwg):
    A(f".globl {name}"); A(".p2align 8"); A(f".type {name},@function"); A(f"{name}:")
    A(f"s_cmp_ge_u32 s2, {nwg}"); A(f"s_cbranch_scc1 L_end_{name}")

def common_ids(A):
    A("v_lshrrev_b32 v1, 6, v0"); A("s_and_b32 s16, s2, 7"); A("v_readfirstlane_b32 s3, v1")
    A("v_and_b32 v1, 63, v0"); A("s_lshr_b32 s17, s2, 3"); A("s_and_b32 s18, s17, 3")

def k1(A, LD):
    name = "g1_kernel"
    head(A, name, 256)
    A("s_load_dwordx2 s[4:5], s[0:1], 0")
    A("s_load_dwordx2 s[6:7], s[0:1], 32")
    A("s_load_dwordx2 s[8:9], s[0:1], 64")
    common_ids(A)
    A("s_lshr_b32 s19, s17, 2"); A("s_and_b32 s19, s19, 3")
    A("s_lshl_b32 s20, s18, 2"); A("s_add_u32 s20, s20, s19")
    A("s_lshr_b32 s21, s17, 4"); A("s_lshl_b32 s22, s16, 1"); A("s_add_u32 s21, s21, s22")
    A("v_and_b32 v2, 15, v1"); A("v_lshrrev_b32 v3, 4, v1")
    A("v_lshlrev_b32 v4, 11, v2"); A("v_lshl_add_u32 v4, v3, 4, v4")
    A("s_lshl_b32 s23, s20, 15"); A("s_lshl_b32 s24, s3, 9"); A("s_add_u32 s23, s23, s24")
    A("v_lshrrev_b32 v5, 3, v1"); A("v_and_b32 v6, 7, v1")
    A("v_and_b32 v7, 2, v5")
    A("v_xor_b32 v6, v6, v7")
    A("v_lshlrev_b32 v8, 11, v5")
    A("v_lshl_add_u32 v9, v6, 4, v8")
    A("v_xor_b32 v10, 64, v9")
    A("s_lshl_b32 s25, s3, 19"); A("s_lshl_b32 s26, s21, 7"); A("s_add_u32 s25, s25, s26")
    A("s_lshl_b32 s27, s3, 15")
    A("s_waitcnt lgkmcnt(0)")
    srd(A, 32, 4, 256*1024*2); srd(A, 36, 6, 1024*1024*2); srd(A, 40, 8, 0x10000000)
    for s in range(8):
        A(f"buffer_load_dwordx4 v[{16+4*s}:{19+4*s}], v4, s[32:35], s23 offen offset:{64*s} {LD}")
    for i in range(32):
        A(f"s_add_u32 m0, s27, {i*1024}")
        A(f"s_add_u32 s28, s25, {i*8*2048}")
        A(f"buffer_load_dwordx4 v{9+(i&1)}, s[36:39], s28 offen {LD} lds")
    A("v_lshrrev_b32 v11, 2, v2")
    A("v_and_b32 v12, 3, v2")
    A("v_lshlrev_b32 v13, 10, v3")
    A("v_lshl_add_u32 v13, v11, 7, v13")
    A("v_lshl_add_u32 v13, v12, 3, v13")
    A("v_lshrrev_b32 v14, 1, v11")
    A("v_and_b32 v15, 1, v3")
    A("v_lshl_add_u32 v14, v15, 1, v14")
    A("v_lshlrev_b32 v14, 5, v14")
    A("v_add_u32 v13, s27, v13")
    for t in range(4):
        A(f"v_xor_b32 v{48+t}, {32*t}, v14"); A(f"v_add_u32 v{48+t}, v{48+t}, v13")
    for s in range(8):
        A(f"s_waitcnt vmcnt({28-4*s})")
        b = 80 + 16*(s&1)
        for t in range(4):
            A(f"ds_read_b64_tr_b16 v[{b+4*t}:{b+4*t+1}], v{48+t} offset:{s*4096}")
            A(f"ds_read_b64_tr_b16 v[{b+4*t+2}:{b+4*t+3}], v{48+t} offset:{s*4096+512}")
        for t in range(4):
            A(f"s_waitcnt lgkmcnt({6-2*t})")
            c = "0" if s == 0 else f"v[{64+4*t}:{67+4*t}]"
            A(f"v_mfma_f32_16x16x32_bf16 v[{64+4*t}:{67+4*t}], v[{b+4*t}:{b+4*t+3}], v[{16+4*s}:{19+4*s}], {c}")
    A("v_lshlrev_b32 v52, 4, v1"); A("v_add_u32 v53, s27, v52")
    A("s_nop 7")
    for t in range(4):
        A(f"ds_write_b128 v53, v[{64+4*t}:{67+4*t}] offset:{t*1024}")
    A("s_waitcnt lgkmcnt(0)"); A("s_barrier")
    A("s_cmp_ge_u32 s3, 2"); A(f"s_cbranch_scc1 L_end_{name}")
    A("s_lshl_b32 s28, s3, 11"); A("v_add_u32 v53, s28, v52")
    A("v_add_u32 v54, 0x10000, v53")
    for wv in range(4):
        for tt in range(2):
            r = 80 + (wv*2+tt)*4
            A(f"ds_read_b128 v[{r}:{r+3}], v{53+(wv>>1)} offset:{(wv&1)*32768+tt*1024}")
    A("s_waitcnt lgkmcnt(0)")
    for e in range(8):
        A(f"v_add_f32 v{80+e}, v{80+e}, v{88+e}"); A(f"v_add_f32 v{96+e}, v{96+e}, v{104+e}")
    for e in range(8):
        A(f"v_add_f32 v{80+e}, v{80+e}, v{96+e}")
    for e in range(4):
        A(f"v_cvt_pk_bf16_f32 v{64+e}, v{80+2*e}, v{81+2*e}")
    A("s_lshl_b32 s28, s18, 5"); A("s_lshl_b32 s29, s21, 1"); A("s_add_u32 s28, s28, s29"); A("s_add_u32 s28, s28, s3")
    A("s_lshl_b32 s28, s28, 2"); A("s_add_u32 s28, s28, s19"); A("s_lshl_b32 s28, s28, 10")
    if XR_OFF: A(f"s_add_u32 s28, s28, {XR_OFF}")
    A("buffer_store_dwordx4 v[64:67], v52, s[40:43], s28 offen")
    A(f"L_end_{name}:"); A("s_endpgm")
    kd(A, name, 128, 128)

def cb_id(A):
    A("s_lshr_b32 s19, s17, 2"); A("s_mul_i32 s20, s16, 7"); A("s_add_u32 s19, s19, s20")

def k2(A, LD):
    name = "g2_kernel"
    head(A, name, 224)
    A("s_load_dwordx2 s[4:5], s[0:1], 8")
    A("s_load_dwordx4 s[8:11], s[0:1], 16")
    A("s_load_dwordx2 s[6:7], s[0:1], 64")
    common_ids(A); cb_id(A)
    A("v_and_b32 v2, 15, v1"); A("v_lshrrev_b32 v3, 4, v1")
    A("v_mul_u32_u24 v4, 57344, v3"); A("v_lshl_add_u32 v4, v2, 4, v4")
    A(f"s_mul_i32 s21, s3, {256*14336}"); A("s_lshl_b32 s22, s19, 8"); A("s_add_u32 s21, s21, s22")
    A("v_lshlrev_b32 v5, 3, v2")
    A(f"s_mul_i32 s23, s3, {4*7168}"); A("s_lshl_b32 s22, s19, 7"); A("s_add_u32 s23, s23, s22")
    A("v_lshlrev_b32 v6, 4, v1")
    A("s_lshl_b32 s24, s18, 5"); A("s_lshl_b32 s25, s3, 3"); A("s_add_u32 s24, s24, s25"); A("s_lshl_b32 s24, s24, 12")
    if XR_OFF: A(f"s_add_u32 s24, s24, {XR_OFF}")
    A("s_waitcnt lgkmcnt(0)")
    srd(A, 32, 4, 1024*3584*4); srd(A, 36, 8, 16*3584*2); srd(A, 44, 10, 16*3584*2); srd(A, 40, 6, 0x10000000)
    for gi in range(4):
        A(f"s_add_u32 s26, s23, {gi*7168}")
        A(f"buffer_load_dwordx2 v[{8+4*gi}:{9+4*gi}], v5, s[36:39], s26 offen")
        A(f"buffer_load_dwordx2 v[{10+4*gi}:{11+4*gi}], v5, s[44:47], s26 offen")
    RQ = 128
    def qload(s):
        for i in range(8):
            row = 32*s + 16*(i>>2) + (i&3)
            r = RQ + 32*(s&3) + 4*i
            A(f"s_add_u32 s26, s21, {row*14336}")
            A(f"buffer_load_dwordx4 v[{r}:{r+3}], v4, s[32:35], s26 offen {LD}")
    def aload(s):
        A(f"s_add_u32 s26, s24, {s*4096}")
        for rt in range(4):
            r = 16*s + 4*rt
            A(f"buffer_load_dwordx4 a[{r}:{r+3}], v6, s[40:43], s26 offen offset:{rt*1024}")
    for s in range(4):
        qload(s); aload(s)
    A("s_waitcnt vmcnt(48)")
    for gi in range(4):
        s0 = 24 + 8*gi
        A(f"v_lshlrev_b32 v{s0}, 16, v{8+4*gi}"); A(f"v_and_b32 v{s0+1}, 0xffff0000, v{8+4*gi}")
        A(f"v_lshlrev_b32 v{s0+2}, 16, v{9+4*gi}"); A(f"v_and_b32 v{s0+3}, 0xffff0000, v{9+4*gi}")
        A(f"v_lshlrev_b32 v{s0+4}, 16, v{10+4*gi}"); A(f"v_and_b32 v{s0+5}, 0xffff0000, v{10+4*gi}")
        A(f"v_lshlrev_b32 v{s0+6}, 16, v{11+4*gi}"); A(f"v_and_b32 v{s0+7}, 0xffff0000, v{11+4*gi}")
        for t in range(4):
            A(f"v_mul_f32 v{s0+4+t}, -v{s0+4+t}, v{s0+t}")
    for s in range(8):
        rem = min(3, 7-s)
        A(f"s_waitcnt vmcnt({12*rem})")
        q = RQ + 32*(s&3); s0 = 24 + 8*(s>>1); b = 56 + 16*(s&1)
        for e in range(32): A(f"v_cvt_f32_i32 v{q+e}, v{q+e}")
        for i in range(8):
            for h2 in range(2):
                r = q + 4*i + 2*h2
                A(f"v_pk_fma_f32 v[{r}:{r+1}], v[{r}:{r+1}], v[{s0+2*h2}:{s0+2*h2+1}], v[{s0+4+2*h2}:{s0+5+2*h2}]")
        for t in range(4):
            for jj in range(4):
                A(f"v_cvt_pk_bf16_f32 v{b+4*t+jj}, v{q+8*jj+t}, v{q+8*jj+4+t}")
        if s + 4 < 8:
            qload(s+4); aload(s+4)
        else:
            A("s_nop 1")
        for t in range(4):
            for rt in range(4):
                d = 128 + (rt*4+t)*4
                c = "0" if s == 0 else f"a[{d}:{d+3}]"
                A(f"v_mfma_f32_16x16x32_bf16 a[{d}:{d+3}], v[{b+4*t}:{b+4*t+3}], a[{16*s+4*rt}:{16*s+4*rt+3}], {c}")
    A("s_lshl_b32 s27, s3, 14"); A("v_add_u32 v7, s27, v6")
    A("s_nop 7")
    for rt in range(4):
        for t in range(4):
            d = 128 + (rt*4+t)*4
            A(f"ds_write_b128 v7, a[{d}:{d+3}] offset:{(rt*4+t)*1024}")
    A("s_waitcnt lgkmcnt(0)"); A("s_barrier")
    A("s_lshl_b32 s27, s3, 12"); A("v_add_u32 v7, s27, v6")
    for wv in range(4):
        for t in range(4):
            r = 128 + (wv*4+t)*4
            A(f"ds_read_b128 v[{r}:{r+3}], v7 offset:{wv*16384+t*1024}")
    A("s_waitcnt lgkmcnt(0)")
    for e in range(16):
        A(f"v_add_f32 v{128+e}, v{128+e}, v{144+e}"); A(f"v_add_f32 v{160+e}, v{160+e}, v{176+e}")
    for e in range(16):
        A(f"v_add_f32 v{128+e}, v{128+e}, v{160+e}")
    for r in range(4):
        for h2 in range(2):
            A(f"v_cvt_pk_bf16_f32 v{64+2*r+h2}, v{128+4*(2*h2)+r}, v{128+4*(2*h2+1)+r}")
    A("v_lshlrev_b32 v8, 11, v3"); A("v_lshl_add_u32 v8, v2, 4, v8")
    A("s_mul_i32 s26, s18, 458752"); A("s_lshl_b32 s27, s19, 13"); A("s_add_u32 s26, s26, s27")
    A("s_lshr_b32 s27, s3, 1"); A("s_lshl_b32 s27, s27, 10"); A("s_add_u32 s26, s26, s27")
    A("s_and_b32 s27, s3, 1"); A("s_lshl_b32 s27, s27, 8"); A("s_add_u32 s26, s26, s27")
    A(f"s_add_u32 s26, s26, {H_OFF}")
    A("buffer_store_dwordx4 v[64:67], v8, s[40:43], s26 offen")
    A("buffer_store_dwordx4 v[68:71], v8, s[40:43], s26 offen offset:512")
    A(f"L_end_{name}:"); A("s_endpgm")
    kd(A, name, 512, 256)

def k3(A, LD):
    name = "g3_kernel"
    head(A, name, 224)
    A("s_load_dwordx4 s[4:7], s[0:1], 40")
    A("s_load_dwordx2 s[8:9], s[0:1], 64")
    common_ids(A); cb_id(A)
    A("v_lshrrev_b32 v2, 3, v1"); A("v_and_b32 v3, 7, v1")
    A("v_and_b32 v4, 2, v2"); A("v_lshlrev_b32 v4, 1, v4"); A("v_xor_b32 v3, v3, v4")
    A("v_mul_u32_u24 v4, 7168, v2"); A("v_lshl_add_u32 v4, v3, 4, v4")
    A(f"s_mul_i32 s21, s3, {896*7168}"); A("s_lshl_b32 s22, s19, 7"); A("s_add_u32 s21, s21, s22")
    A("v_lshlrev_b32 v6, 4, v1")
    A("s_mul_i32 s24, s18, 458752"); A(f"s_mul_i32 s25, s3, {56*2048}"); A("s_add_u32 s24, s24, s25"); A(f"s_add_u32 s24, s24, {H_OFF}")
    A("s_lshl_b32 s27, s3, 15")
    A("v_lshrrev_b32 v7, 5, v1"); A("v_lshlrev_b32 v7, 10, v7")
    A("v_bfe_u32 v8, v1, 2, 2"); A("v_lshl_add_u32 v7, v8, 7, v7")
    A("v_bfe_u32 v9, v1, 4, 1"); A("v_lshl_add_u32 v7, v9, 5, v7")
    A("v_and_b32 v9, 3, v1"); A("v_lshl_add_u32 v7, v9, 3, v7")
    A("v_lshrrev_b32 v8, 1, v8"); A("v_lshl_add_u32 v7, v8, 6, v7")
    A("v_add_u32 v7, s27, v7"); A("v_xor_b32 v8, 64, v7")
    A("s_waitcnt lgkmcnt(0)")
    srd(A, 32, 4, 3584*3584*2); srd(A, 36, 6, 256*3584*2); srd(A, 40, 8, 0x10000000)
    NB = 14; NSLOT = 16; KS = 56
    AR = 128
    def issue(ks):
        sl = ks % NSLOT
        for g2 in range(2):
            A(f"s_add_u32 m0, s27, {sl*2048+g2*1024}")
            A(f"s_add_u32 s28, s21, {(ks*16+g2*8)*7168}")
            A(f"buffer_load_dwordx4 v4, s[32:35], s28 offen {LD} lds")
        A(f"s_add_u32 s28, s24, {ks*2048}")
        r = AR + 8*sl
        A(f"buffer_load_dwordx4 v[{r}:{r+3}], v6, s[40:43], s28 offen")
        A(f"buffer_load_dwordx4 v[{r+4}:{r+7}], v6, s[40:43], s28 offen offset:1024")
    def reads(ks):
        sl = ks % NSLOT; b = 16 + 8*(ks&1)
        for t in range(2):
            A(f"ds_read_b64_tr_b16 v[{b+4*t}:{b+4*t+1}], v{7+t} offset:{sl*2048}")
            A(f"ds_read_b64_tr_b16 v[{b+4*t+2}:{b+4*t+3}], v{7+t} offset:{sl*2048+512}")
    for ks in range(NB): issue(ks)
    A(f"s_waitcnt vmcnt({4*(NB-1)})")
    reads(0)
    for ks in range(KS):
        if ks + 1 < KS:
            infl = min(ks+NB-1, KS-1) - (ks+1)
            A(f"s_waitcnt vmcnt({4*infl})")
            reads(ks+1)
            A("s_waitcnt lgkmcnt(4)")
        else:
            A("s_waitcnt lgkmcnt(0)")
        b = 16 + 8*(ks&1); r = AR + 8*(ks % NSLOT)
        for t in range(2):
            for hf in range(2):
                d = 64 + (hf*2+t)*16
                c = "0" if ks == 0 else f"v[{d}:{d+15}]"
                A(f"v_mfma_f32_32x32x16_bf16 v[{d}:{d+15}], v[{b+4*t}:{b+4*t+3}], v[{r+4*hf}:{r+4*hf+3}], {c}")
        if ks + NB < KS: issue(ks+NB)
    A("v_add_u32 v9, s27, v6")
    A("s_nop 15")
    for tl in range(4):
        for qd in range(4):
            d = 64 + tl*16 + qd*4
            A(f"ds_write_b128 v9, v[{d}:{d+3}] offset:{(tl*4+qd)*1024}")
    A("s_waitcnt lgkmcnt(0)"); A("s_barrier")
    A("s_lshl_b32 s28, s3, 12"); A("v_add_u32 v9, s28, v6"); A("v_add_u32 v10, 0x10000, v9")
    for wv in range(4):
        for qd in range(4):
            r = 128 + (wv*4+qd)*4
            A(f"ds_read_b128 v[{r}:{r+3}], v{9+(wv>>1)} offset:{(wv&1)*32768+qd*1024}")
    A("s_waitcnt lgkmcnt(0)")
    for e in range(16):
        A(f"v_add_f32 v{128+e}, v{128+e}, v{144+e}"); A(f"v_add_f32 v{160+e}, v{160+e}, v{176+e}")
    for e in range(16):
        A(f"v_add_f32 v{128+e}, v{128+e}, v{160+e}")
    for e in range(8):
        A(f"v_cvt_pk_bf16_f32 v{64+e}, v{128+2*e}, v{129+2*e}")
    A("s_nop 1")
    A("v_permlane32_swap_b32 v64, v66"); A("v_permlane32_swap_b32 v65, v67")
    A("v_permlane32_swap_b32 v68, v70"); A("v_permlane32_swap_b32 v69, v71")
    A("v_and_b32 v11, 31, v1"); A("v_mul_u32_u24 v11, 7168, v11"); A("v_lshrrev_b32 v12, 5, v1"); A("v_lshl_add_u32 v11, v12, 4, v11")
    A("s_lshl_b32 s26, s18, 1"); A("s_lshr_b32 s28, s3, 1"); A("s_add_u32 s26, s26, s28"); A(f"s_mul_i32 s26, s26, {32*7168}")
    A("s_lshl_b32 s28, s19, 7"); A("s_add_u32 s26, s26, s28"); A("s_and_b32 s28, s3, 1"); A("s_lshl_b32 s28, s28, 6"); A("s_add_u32 s26, s26, s28")
    A("buffer_store_dwordx4 v[64:67], v11, s[36:39], s26 offen")
    A("buffer_store_dwordx4 v[68:71], v11, s[36:39], s26 offen offset:32")
    A(f"L_end_{name}:"); A("s_endpgm")
    kd(A, name, 256, 256)

def gen(LD=""):
    A = Asm()
    A("; @launch kernel=g1_kernel grid=(256,1,1) block=(256,1,1) lds=131072")
    A("; @launch kernel=g2_kernel grid=(224,1,1) block=(256,1,1) lds=65536")
    A("; @launch kernel=g3_kernel grid=(224,1,1) block=(256,1,1) lds=131072")
    A('.amdgcn_target "amdgcn-amd-amdhsa--gfx950"'); A(".text")
    k1(A, LD); k2(A, LD); k3(A, LD)
    return A.text()
if __name__ == "__main__":
    out = sys.argv[1]; LD = sys.argv[2] if len(sys.argv) > 2 else ""
    open(out, "w").write(gen(LD))
```

```python
STAMP_OFF = 8 << 20
def stamp_start(A, sreg=90):
    A(f"s_memrealtime s[{sreg}:{sreg+1}]")
def stamp_end(A, kidx, srd, sreg=90, wavereg="s3", label="x"):
    A("s_waitcnt vmcnt(0) lgkmcnt(0)")
    A(f"s_memrealtime s[{sreg+2}:{sreg+3}]")
    A(f"s_cmp_lg_u32 {wavereg}, 0"); A(f"s_cbranch_scc1 L_nostamp_{label}")
    A("s_waitcnt lgkmcnt(0)")
    A(f"s_lshl_b32 s{sreg+1}, s2, 3"); A(f"s_add_u32 s{sreg+1}, s{sreg+1}, {STAMP_OFF + kidx*8192}")
    A(f"v_mov_b32 v2, s{sreg}"); A(f"v_mov_b32 v3, s{sreg+2}"); A(f"v_mov_b32 v4, 0")
    A(f"buffer_store_dwordx2 v[2:3], v4, s[{srd}:{srd+3}], s{sreg+1} offen")
    A(f"L_nostamp_{label}:")
def amp_kernel(setA, nA, fldA, opA, setB, nB, fldB, opB, K):
    dop = {"min": "max", "max": "min"}
    init = {"max": 0, "min": 0xffffffff}
    return f"""
.globl amp_kernel
.p2align 8
.type amp_kernel,@function
amp_kernel:
s_cmp_ge_u32 s2, 1
s_cbranch_scc1 L_amp_end
s_load_dwordx2 s[4:5], s[0:1], 64
s_memrealtime s[20:21]
s_waitcnt lgkmcnt(0)
s_mov_b32 s8, s4
s_mov_b32 s9, s5
s_mov_b32 s10, 0x10000000
s_mov_b32 s11, 0x20000
v_min_u32 v1, {nA-1}, v0
v_min_u32 v2, {nB-1}, v0
v_lshlrev_b32 v1, 3, v1
v_lshlrev_b32 v2, 3, v2
s_mov_b32 s12, {STAMP_OFF + setA*8192 + 4*fldA}
s_mov_b32 s13, {STAMP_OFF + setB*8192 + 4*fldB}
buffer_load_dword v3, v1, s[8:11], s12 offen
buffer_load_dword v4, v2, s[8:11], s13 offen
v_mov_b32 v5, 0
v_mov_b32 v6, {init[dop[opA]]}
v_mov_b32 v7, {init[dop[opB]]}
v_mov_b32 v8, s20
ds_write_b32 v5, v6
ds_write_b32 v5, v7 offset:4
v_cmp_eq_u32 vcc, 0, v0
s_and_saveexec_b64 s[30:31], vcc
ds_write_b32 v5, v8 offset:8
s_mov_b64 exec, s[30:31]
s_waitcnt vmcnt(0) lgkmcnt(0)
s_barrier
ds_read_b32 v8, v5 offset:8
s_waitcnt lgkmcnt(0)
v_sub_u32 v3, v8, v3
v_sub_u32 v4, v8, v4
ds_{dop[opA]}_u32 v5, v3
ds_{dop[opB]}_u32 v5, v4 offset:4
s_waitcnt lgkmcnt(0)
s_barrier
ds_read_b32 v6, v5
ds_read_b32 v7, v5 offset:4
s_waitcnt lgkmcnt(0)
v_sub_u32 v6, v6, v7
s_nop 1
v_readfirstlane_b32 s14, v6
s_nop 3
s_min_u32 s14, s14, 20000
s_mul_i32 s14, s14, {K}
s_memrealtime s[20:21]
s_waitcnt lgkmcnt(0)
L_amp_spin:
s_memrealtime s[22:23]
s_waitcnt lgkmcnt(0)
s_sub_u32 s15, s22, s20
s_cmp_lt_u32 s15, s14
s_cbranch_scc1 L_amp_spin
L_amp_end:
s_endpgm
.section .rodata,"a"
.p2align 6
.amdhsa_kernel amp_kernel
  .amdhsa_next_free_vgpr 16
  .amdhsa_next_free_sgpr 40
  .amdhsa_accum_offset 16
  .amdhsa_group_segment_fixed_size 0
  .amdhsa_kernarg_size 72
  .amdhsa_user_sgpr_count 2
  .amdhsa_user_sgpr_kernarg_segment_ptr 1
  .amdhsa_system_sgpr_workgroup_id_x 1
.end_amdhsa_kernel
.text
"""
AMP_LAUNCH = "; @launch kernel=amp_kernel grid=(1,1,1) block=(256,1,1) lds=64"
```

```python
import gen_base as g, amp, re, sys
LD = sys.argv[1] if len(sys.argv)>1 else ""
base = g.gen(LD)
out=[]; kidx=-1
lines=base.split("\n")
i=0
names=["g1_kernel","g2_kernel","g3_kernel"]
class W:
    def __init__(s): s.L=[]
    def __call__(s,x): s.L.append(x)
A=W()
for n,l in enumerate(lines):
    m=re.match(r"L_end_(\w+):",l)
    if m:
        amp.stamp_end(A, names.index(m.group(1)), 40, label=m.group(1))
    A(l)
    if l.startswith("s_cbranch_scc1 L_end_") and lines[n-1].startswith("s_cmp_ge_u32 s2,"):
        amp.stamp_start(A)
L=A.L
hdr=L[:3]; rest="\n".join(L[3:])
def w(n, *a):
    open(n,"w").write("\n".join(hdr+[amp.AMP_LAUNCH])+"\n"+rest+amp.amp_kernel(*a))
K=4
w("a0.s", 0,256,0,"min", 0,256,1,"max", 0)
w("a1.s", 0,256,0,"min", 0,256,1,"max", K)
w("a2.s", 1,224,0,"min", 1,224,1,"max", K)
w("a3.s", 2,224,0,"min", 2,224,1,"max", K)
w("a4.s", 0,256,0,"min", 2,224,1,"max", K)
w("a5.s", 0,256,0,"min", 0,256,0,"max", K)
```

```python
import sys
NAME = "standalone__weight_only_int_quip__sampling_kernel"
XR_OFF   = 0x000000
H_OFF    = 0x100000
EP_OFF   = 0x300000
F1_OFF   = 0x310000
F2_OFF   = 0x320000
F3_OFF   = 0x380000
PART_OFF = 0x1000000
STAMP_OFF = 0x800000
TAGC = 0x9E3779B9

class Asm:
    def __init__(self, diag=False):
        self.L = []; self.vm = []; self.diag = diag; self.nst = 0; self.stnames = []
    def __call__(self, s): self.L.append(s)
    def text(self): return "\n".join(self.L) + "\n"
    def vmem(self, s, tag):
        if len(self.vm) >= 63:
            self.wait_n(62)
        self.L.append(s); self.vm.append(tag)
    def wait_n(self, n):
        if len(self.vm) > n:
            self.L.append(f"s_waitcnt vmcnt({n})"); self.vm = self.vm[len(self.vm)-n:] if n else []
    def wait_tag(self, tag):
        idx = [i for i, t in enumerate(self.vm) if t == tag]
        if idx: self.wait_n(len(self.vm) - 1 - idx[-1])
    def wait_all(self): self.wait_n(0)
    def stamp(self, name):
        if not self.diag: return
        r = 64 + 2*self.nst; assert r + 1 < 100
        self.L.append(f"s_memrealtime s[{r}:{r+1}]"); self.L.append("s_waitcnt lgkmcnt(0)")
        self.nst += 1; self.stnames.append(name)

def srd(A, d, b, nbytes):
    A(f"s_mov_b32 s{d}, s{b}"); A(f"s_mov_b32 s{d+1}, s{b+1}"); A(f"s_mov_b32 s{d+2}, {nbytes}"); A(f"s_mov_b32 s{d+3}, 0x20000")

SX, SQ, SS, SZ, SU, SV, SO, SW = 24, 28, 32, 36, 40, 44, 48, 52
def poll(A, label, voff, soff, delay=0):
    if delay: A(f"s_sleep {delay}")
    A("s_mov_b32 s63, 100000")
    A(f"{label}:")
    A(f"buffer_load_dword v7, {voff}, s[{SW}:{SW+3}], {soff} offen sc1")
    A("s_sub_u32 s63, s63, 1")
    A(f"s_cbranch_scc1 {label}_x")
    A("s_waitcnt vmcnt(0)")
    A("v_cmp_ne_u32 vcc, s60, v7")
    A(f"s_cbranch_vccnz {label}")
    A(f"{label}_x:")
    A.vm = []

def gen(diag=False, P=None):
    P = P or {}
    VB1 = P.get("VB1", 24)
    A = Asm(diag)
    A("; @launch grid=(256,1,1) block=(256,1,1) lds=163840")
    A('.amdgcn_target "amdgcn-amd-amdhsa--gfx950"'); A(".text")
    A(f".globl {NAME}"); A(".p2align 8"); A(f".type {NAME},@function"); A(f"{NAME}:")
    A("s_cmp_ge_u32 s2, 256"); A("s_cbranch_scc1 L_end")
    if diag: A("s_memrealtime s[64:65]"); A.nst = 1; A.stnames.append("start")
    A("s_load_dwordx16 s[4:19], s[0:1], 0")
    A("s_load_dwordx2 s[20:21], s[0:1], 64")
    A("v_lshrrev_b32 v1, 6, v0"); A("s_and_b32 s56, s2, 7"); A("v_readfirstlane_b32 s3, v1")
    A("v_and_b32 v1, 63, v0"); A("s_lshr_b32 s57, s2, 3")
    A("s_and_b32 s61, s57, 1"); A("s_lshl_b32 s58, s61, 1"); A("s_bfe_u32 s62, s57, 0x10001"); A("s_add_u32 s58, s58, s62")
    A("s_lshr_b32 s59, s57, 2"); A("s_mul_i32 s62, s56, 7"); A("s_add_u32 s59, s59, s62")
    A("v_lshlrev_b32 v2, 4, v1")
    A("v_and_b32 v3, 15, v1")
    A("v_lshrrev_b32 v4, 4, v1")
    A("v_lshlrev_b32 v112, 11, v3"); A("v_lshl_add_u32 v112, v4, 4, v112")
    A("v_lshrrev_b32 v113, 3, v1"); A("v_and_b32 v114, 7, v1"); A("v_and_b32 v115, 2, v113"); A("v_xor_b32 v114, v114, v115")
    A("v_lshlrev_b32 v113, 11, v113"); A("v_lshl_add_u32 v116, v114, 4, v113"); A("v_xor_b32 v117, 64, v116")
    A("s_waitcnt lgkmcnt(0)")
    A("s_lshl_b32 s61, s61, 7"); A(f"s_add_u32 s61, s61, {EP_OFF}"); A("s_add_u32 s22, s20, s61"); A("s_addc_u32 s23, s21, 0")
    A("s_load_dword s60, s[22:23], 0")
    srd(A, SX, 4, 256*1024*2); srd(A, SU, 12, 1024*1024*2)
    A("s_bfe_u32 s4, s57, 0x20002"); A("s_lshr_b32 s5, s57, 4"); A("s_lshl_b32 s62, s56, 1"); A("s_add_u32 s5, s5, s62")
    A("s_lshl_b32 s61, s58, 2"); A("s_add_u32 s61, s61, s4"); A("s_lshl_b32 s61, s61, 15"); A("s_lshl_b32 s62, s3, 9"); A("s_add_u32 s61, s61, s62")
    for s in range(8):
        A.vmem(f"buffer_load_dwordx4 v[{16+4*s}:{19+4*s}], v112, s[{SX}:{SX+3}], s61 offen offset:{64*s}", "x")
    A("s_lshl_b32 s12, s3, 19"); A("s_lshl_b32 s62, s5, 7"); A("s_add_u32 s12, s12, s62")
    A("s_lshl_b32 s13, s3, 15")
    for i in range(32):
        A(f"s_add_u32 m0, s13, {i*1024}"); A(f"s_add_u32 s62, s12, {i*8*2048}")
        A.vmem(f"buffer_load_dwordx4 v{116+(i&1)}, s[{SU}:{SU+3}], s62 offen lds", f"U{i//4}")
    srd(A, SQ, 6, 1024*3584*4); srd(A, SS, 8, 16*3584*2); srd(A, SZ, 10, 16*3584*2); srd(A, SV, 14, 3584*3584*2)
    srd(A, SO, 16, 256*3584*2); srd(A, SW, 20, 0x10000000)
    A("s_cmp_lt_u32 s57, 28"); A("s_cselect_b32 s6, 1, 0")
    A(f"s_cselect_b32 s{SQ+2}, s{SQ+2}, 0"); A(f"s_cselect_b32 s{SS+2}, s{SS+2}, 0"); A(f"s_cselect_b32 s{SZ+2}, s{SZ+2}, 0")
    A("v_mul_u32_u24 v5, 57344, v4"); A("v_lshl_add_u32 v5, v3, 4, v5")
    A(f"s_mul_i32 s7, s3, {256*14336}"); A("s_lshl_b32 s62, s59, 8"); A("s_add_u32 s7, s7, s62")
    A("v_lshlrev_b32 v118, 3, v3")
    A(f"s_mul_i32 s8, s3, {4*7168}"); A("s_lshl_b32 s62, s59, 7"); A("s_add_u32 s8, s8, s62")
    for gi in range(4):
        A(f"s_add_u32 s62, s8, {gi*7168}")
        A.vmem(f"buffer_load_dwordx2 v[{144+4*gi}:{145+4*gi}], v118, s[{SS}:{SS+3}], s62 offen", "sc")
        A.vmem(f"buffer_load_dwordx2 v[{146+4*gi}:{147+4*gi}], v118, s[{SZ}:{SZ+3}], s62 offen", "sc")
    RQ = 160
    def qload(s):
        for i in range(8):
            row = 32*s + 16*(i>>2) + (i&3); r = RQ + 32*(s%3) + 4*i
            A(f"s_add_u32 s62, s7, {row*14336}")
            A.vmem(f"buffer_load_dwordx4 v[{r}:{r+3}], v5, s[{SQ}:{SQ+3}], s62 offen", f"q{s}")
    QPRE = P.get("QPRE", 1)
    A("v_lshrrev_b32 v124, 2, v3"); A("v_and_b32 v125, 3, v3"); A("v_lshlrev_b32 v126, 10, v4")
    A("v_lshl_add_u32 v126, v124, 7, v126"); A("v_lshl_add_u32 v126, v125, 3, v126")
    A("v_lshrrev_b32 v127, 1, v124"); A("v_and_b32 v128, 1, v4"); A("v_lshl_add_u32 v127, v128, 1, v127"); A("v_lshlrev_b32 v127, 5, v127")
    A("v_add_u32 v126, s13, v126")
    for t in range(4):
        A(f"v_xor_b32 v{120+t}, {32*t}, v127"); A(f"v_add_u32 v{120+t}, v{120+t}, v126")
    if QPRE >= 1: qload(0)
    A("s_waitcnt lgkmcnt(0)")
    A(f"s_add_u32 s60, s60, {TAGC}")
    for s in range(8):
        A.wait_tag(f"U{s}")
        b = 80 + 16*(s&1)
        for t in range(4):
            A(f"ds_read_b64_tr_b16 v[{b+4*t}:{b+4*t+1}], v{120+t} offset:{s*4096}")
            A(f"ds_read_b64_tr_b16 v[{b+4*t+2}:{b+4*t+3}], v{120+t} offset:{s*4096+512}")
        for t in range(4):
            A(f"s_waitcnt lgkmcnt({6-2*t})")
            c = "0" if s == 0 else f"v[{64+4*t}:{67+4*t}]"
            A(f"v_mfma_f32_16x16x32_bf16 v[{64+4*t}:{67+4*t}], v[{b+4*t}:{b+4*t+3}], v[{16+4*s}:{19+4*s}], {c}")
    A.stamp("g1mfma")
    A("s_lshl_b32 s62, s3, 12"); A("s_add_u32 s62, s62, 0x20000"); A("v_add_u32 v6, s62, v2")
    A("s_nop 5")
    for t in range(4):
        A(f"ds_write_b128 v6, v[{64+4*t}:{67+4*t}] offset:{t*1024}")
    A("s_waitcnt lgkmcnt(0)"); A("s_barrier")
    A("s_cmp_lg_u32 s3, 0"); A("s_cbranch_scc1 L_g1pub_done")
    A("v_add_u32 v6, 0x20000, v2")
    for wv in range(4):
        for t in range(4):
            r = 16 + (wv*4+t)*4
            A(f"ds_read_b128 v[{r}:{r+3}], v6 offset:{wv*4096+t*1024}")
    A("s_lshl_b32 s61, s58, 5"); A("s_lshl_b32 s62, s5, 1"); A("s_add_u32 s61, s61, s62"); A("s_lshl_b32 s61, s61, 2")
    A("s_add_u32 s61, s61, s4"); A("s_lshl_b32 s61, s61, 10"); A("s_add_u32 s63, s61, 4096")
    A("s_waitcnt lgkmcnt(0)")
    for e in range(16):
        A(f"v_add_f32 v{16+e}, v{16+e}, v{32+e}"); A(f"v_add_f32 v{48+e}, v{48+e}, v{64+e}")
    for e in range(16): A(f"v_add_f32 v{16+e}, v{16+e}, v{48+e}")
    for e in range(8): A(f"v_cvt_pk_bf16_f32 v{80+e}, v{16+2*e}, v{17+2*e}")
    A(f"buffer_store_dwordx4 v[80:83], v2, s[{SW}:{SW+3}], s61 offen sc1")
    A(f"buffer_store_dwordx4 v[84:87], v2, s[{SW}:{SW+3}], s63 offen sc1")
    A("s_lshl_b32 s61, s58, 6"); A("s_lshl_b32 s62, s5, 2"); A("s_add_u32 s61, s61, s62"); A("s_add_u32 s61, s61, s4")
    A("s_lshl_b32 s61, s61, 7"); A(f"s_add_u32 s61, s61, {F1_OFF}")
    A("v_mov_b32 v6, 0"); A("v_mov_b32 v7, s60")
    A("s_waitcnt vmcnt(0)")
    A("s_mov_b64 exec, 1")
    A(f"buffer_store_dword v7, v6, s[{SW}:{SW+3}], s61 offen sc1")
    A("s_mov_b64 exec, -1")
    A("L_g1pub_done:")
    A.stamp("g1pub")
    A("s_cmp_eq_u32 s6, 0"); A("s_cbranch_scc1 L_fin")
    A("s_lshr_b32 s9, s56, 1"); A("s_and_b32 s10, s57, 1"); A("s_and_b32 s61, s56, 1"); A("s_mul_i32 s11, s61, 14")
    A("s_lshr_b32 s61, s57, 1"); A("s_add_u32 s11, s11, s61")
    A("v_lshlrev_b32 v6, 2, v4"); A("v_xor_b32 v6, v6, v3"); A("v_lshlrev_b32 v6, 4, v6"); A("v_mul_u32_u24 v7, 7168, v4"); A("v_add_u32 v6, v6, v7")
    A("s_mul_i32 s14, s9, 896"); A("s_lshl_b32 s61, s3, 2"); A("s_add_u32 s14, s14, s61"); A("s_mul_i32 s14, s14, 7168")
    A("s_lshl_b32 s61, s11, 8"); A("s_add_u32 s14, s14, s61")
    A("s_lshl_b32 s15, s3, 10")
    def vdma(ks, slot):
        A(f"s_add_u32 m0, s15, {slot*4096}"); A(f"s_add_u32 s62, s14, {ks*16*7168}")
        A.vmem(f"buffer_load_dwordx4 v6, s[{SV}:{SV+3}], s62 offen lds", "V")
    for s in range(QPRE, 3): qload(s)
    vnext = 0
    for s in range(8):
        A.wait_tag(f"q{s}")
        if s % 2 == 0:
            gi = s >> 1; r = 144 + 4*gi
            A(f"v_lshlrev_b32 v8, 16, v{r}"); A(f"v_and_b32 v9, 0xffff0000, v{r}")
            A(f"v_lshlrev_b32 v10, 16, v{r+1}"); A(f"v_and_b32 v11, 0xffff0000, v{r+1}")
            A(f"v_lshlrev_b32 v12, 16, v{r+2}"); A(f"v_and_b32 v13, 0xffff0000, v{r+2}")
            A(f"v_lshlrev_b32 v14, 16, v{r+3}"); A(f"v_and_b32 v15, 0xffff0000, v{r+3}")
            for t in range(4): A(f"v_mul_f32 v{12+t}, -v{12+t}, v{8+t}")
        q = RQ + 32*(s%3); b = 16 + 16*s
        for e in range(32): A(f"v_cvt_f32_i32 v{q+e}, v{q+e}")
        for i in range(8):
            for h2 in range(2):
                r = q + 4*i + 2*h2
                A(f"v_pk_fma_f32 v[{r}:{r+1}], v[{r}:{r+1}], v[{8+2*h2}:{9+2*h2}], v[{12+2*h2}:{13+2*h2}]")
        for t in range(4):
            for jj in range(4):
                A(f"v_cvt_pk_bf16_f32 v{b+4*t+jj}, v{q+8*jj+t}, v{q+8*jj+4+t}")
        if s + 3 < 8: qload(s+3)
        else:
            n = P.get("VEARLY", 0)//3
            for k in range(n): vdma(vnext, vnext); vnext += 1
    A.stamp("dequant")
    A("v_lshlrev_b32 v8, 7, v3")
    A("s_lshl_b32 s61, s58, 2"); A("s_add_u32 s61, s61, s3"); A("s_lshl_b32 s61, s61, 11"); A(f"s_add_u32 s61, s61, {F1_OFF}")
    poll(A, "L_poll1", "v8", "s61")
    A.stamp("flags1")
    A("s_lshl_b32 s16, s58, 5"); A("s_lshl_b32 s61, s3, 3"); A("s_add_u32 s16, s16, s61"); A("s_lshl_b32 s16, s16, 12")
    def areg(s, rt):
        sl = s % 5
        return (f"v[{208+16*sl+4*rt}:{211+16*sl+4*rt}]" if sl < 3 else f"a[{224+16*(sl-3)+4*rt}:{227+16*(sl-3)+4*rt}]")
    def aload(s):
        A(f"s_add_u32 s62, s16, {s*4096}")
        for rt in range(4):
            A.vmem(f"buffer_load_dwordx4 {areg(s,rt)}, v2, s[{SW}:{SW+3}], s62 offen offset:{rt*1024} sc1", f"a{s}")
    for s in range(5): aload(s)
    for s in range(8):
        A.wait_tag(f"a{s}")
        for t in range(4):
            for rt in range(4):
                d = 144 + (rt*4+t)*4
                c = "0" if s == 0 else f"v[{d}:{d+3}]"
                A(f"v_mfma_f32_16x16x32_bf16 v[{d}:{d+3}], v[{16+16*s+4*t}:{19+16*s+4*t}], {areg(s,rt)}, {c}")
        if s + 5 < 8: aload(s+5)
        elif s >= 3:
            n = P.get("VMID", 10)//5
            for k in range(n):
                if vnext < VB1: vdma(vnext, vnext); vnext += 1
    A.stamp("g2mfma")
    assert VB1 <= 24
    A("s_xor_b32 s62, s3, 2"); A("s_lshl_b32 s62, s62, 14"); A("s_add_u32 s62, s62, 0x18000"); A("v_add_u32 v8, s62, v2")
    A("s_nop 5")
    for rt in range(4):
        for t in range(4):
            d = 144 + (rt*4+t)*4
            A(f"ds_write_b128 v8, v[{d}:{d+3}] offset:{(rt*4+t)*1024}")
    A("s_waitcnt lgkmcnt(0)"); A("s_barrier")
    A("s_lshl_b32 s62, s3, 12"); A("s_add_u32 s62, s62, 0x18000"); A("v_add_u32 v8, s62, v2")
    for wv in range(4):
        for t in range(4):
            r = 144 + (wv*4+t)*4
            A(f"ds_read_b128 v[{r}:{r+3}], v8 offset:{wv*16384+t*1024}")
    A("v_lshlrev_b32 v9, 10, v4"); A("v_lshl_add_u32 v9, v3, 4, v9")
    A("s_lshl_b32 s61, s58, 1"); A("s_lshr_b32 s62, s3, 1"); A("s_add_u32 s61, s61, s62"); A("s_mul_i32 s61, s61, 224")
    A("s_lshl_b32 s62, s59, 2"); A("s_add_u32 s61, s61, s62"); A("s_lshl_b32 s61, s61, 10")
    A("s_and_b32 s62, s3, 1"); A("s_lshl_b32 s62, s62, 8"); A("s_add_u32 s61, s61, s62"); A(f"s_add_u32 s61, s61, {H_OFF}")
    A("s_waitcnt lgkmcnt(0)")
    for e in range(16):
        A(f"v_add_f32 v{144+e}, v{144+e}, v{160+e}"); A(f"v_add_f32 v{176+e}, v{176+e}, v{192+e}")
    for e in range(16): A(f"v_add_f32 v{144+e}, v{144+e}, v{176+e}")
    for r in range(4):
        for h2 in range(2):
            A(f"v_cvt_pk_bf16_f32 v{208+2*r+h2}, v{144+4*(2*h2)+r}, v{144+4*(2*h2+1)+r}")
    A.vmem(f"buffer_store_dwordx4 v[208:211], v9, s[{SW}:{SW+3}], s61 offen sc1", "hst")
    A.vmem(f"buffer_store_dwordx4 v[212:215], v9, s[{SW}:{SW+3}], s61 offen offset:512 sc1", "hst")
    A("s_lshl_b32 s17, s10, 2"); A("s_add_u32 s17, s17, s9"); A("s_lshl_b32 s17, s17, 12"); A(f"s_add_u32 s17, s17, {F2_OFF}")
    A("s_mul_i32 s61, s9, 14"); A("s_sub_u32 s61, s59, s61"); A("s_lshl_b32 s61, s61, 1"); A("s_and_b32 s62, s58, 1"); A("s_add_u32 s61, s61, s62")
    A("s_lshl_b32 s61, s61, 7"); A("s_add_u32 s61, s61, s17")
    A("v_mov_b32 v8, 0"); A("v_mov_b32 v7, s60")
    A.wait_all()
    A("s_barrier")
    A("s_cmp_lg_u32 s3, 0"); A("s_cbranch_scc1 L_f2done")
    A("s_mov_b64 exec, 1")
    A(f"buffer_store_dword v7, v8, s[{SW}:{SW+3}], s61 offen sc1")
    A("s_mov_b64 exec, -1")
    A("L_f2done:")
    A.stamp("g2pub")
    A("v_lshrrev_b32 v10, 5, v1"); A("v_lshlrev_b32 v10, 11, v10"); A("v_bfe_u32 v11, v1, 2, 2"); A("v_lshl_add_u32 v10, v11, 8, v10")
    A("v_xor_b32 v11, s3, v11"); A("v_lshl_add_u32 v10, v11, 6, v10"); A("v_bfe_u32 v11, v1, 4, 1"); A("v_lshl_add_u32 v10, v11, 5, v10")
    A("v_and_b32 v11, 3, v1"); A("v_lshl_add_u32 v10, v11, 3, v10")
    A("v_add_u32 v11, 0x10000, v10"); A("v_add_u32 v12, 0x20000, v10")
    def vread(ks, slot):
        base = slot*4096; vr = 10 + base//65536; off = base % 65536
        A(f"ds_read_b64_tr_b16 a[{4*ks}:{4*ks+1}], v{vr} offset:{off}")
        A(f"ds_read_b64_tr_b16 a[{4*ks+2}:{4*ks+3}], v{vr} offset:{off+1024}")
    landed = vnext
    slot_of = {k: k for k in range(landed)}
    nfree = 40 - landed
    b2 = list(range(landed, min(56, landed + nfree)))
    for i, ks in enumerate(b2):
        slot_of[ks] = landed + i; vdma(ks, landed + i)
    for ks in range(landed): vread(ks, slot_of[ks])
    rest = list(range(landed + len(b2), 56))
    if rest:
        assert len(rest) <= landed or True
        A("s_waitcnt lgkmcnt(0)")
        need = len(rest) - landed
        if need > 0:
            A.wait_n(len(A.vm) - need)
            A("s_barrier")
            for ks in b2[:need]: vread(ks, slot_of[ks])
            A("s_waitcnt lgkmcnt(0)")
            b2 = b2[need:]
        A("s_barrier")
        for i, ks in enumerate(rest):
            slot_of[ks] = i; vdma(ks, i)
    A.wait_all(); A("s_barrier")
    for ks in b2 + rest: vread(ks, slot_of[ks])
    A("s_waitcnt lgkmcnt(0)")
    A.stamp("vdone")
    A("v_min_u32 v8, 27, v1"); A("v_lshlrev_b32 v8, 7, v8")
    poll(A, "L_poll2", "v8", "s17")
    A("s_barrier")
    A.stamp("flags2")
    A("s_lshr_b32 s61, s57, 1"); A("s_or_b32 s61, s61, s56"); A("s_or_b32 s61, s61, s3"); A("s_cmp_lg_u32 s61, 0"); A("s_cbranch_scc1 L_noep")
    A("s_lshl_b32 s61, s10, 7"); A(f"s_add_u32 s61, s61, {EP_OFF}"); A("v_mov_b32 v8, 0"); A("v_mov_b32 v7, s60")
    A("s_mov_b64 exec, 1")
    A(f"buffer_store_dword v7, v8, s[{SW}:{SW+3}], s61 offen sc1")
    A("s_mov_b64 exec, -1")
    A("s_waitcnt vmcnt(0)")
    A("L_noep:")
    A("s_add_u32 s18, s9, s11"); A("s_and_b32 s18, s18, 3")
    pb = [4, 5, 7, 8]
    for p in range(4):
        A(f"s_add_u32 s61, s18, {p+1}"); A("s_and_b32 s61, s61, 3"); A("s_lshl_b32 s62, s10, 2"); A("s_add_u32 s61, s61, s62")
        A("s_mul_i32 s61, s61, 224"); A("s_mul_i32 s62, s9, 56"); A("s_add_u32 s61, s61, s62"); A("s_add_u32 s61, s61, s3")
        A(f"s_lshl_b32 s61, s61, 10"); A(f"s_add_u32 s{pb[p]}, s61, {H_OFF}")
    A("s_mul_i32 s19, s10, 28"); A("s_add_u32 s19, s19, s11")
    A("s_lshl_b32 s12, s19, 18"); A("s_lshl_b32 s61, s9, 14"); A("s_add_u32 s12, s12, s61"); A("s_lshl_b32 s61, s3, 12"); A("s_add_u32 s12, s12, s61")
    A(f"s_add_u32 s12, s12, {PART_OFF}")
    A("s_lshl_b32 s13, s19, 6"); A("s_lshl_b32 s61, s3, 2"); A("s_add_u32 s13, s13, s61"); A("s_add_u32 s13, s13, s9"); A("s_lshl_b32 s13, s13, 7")
    A(f"s_add_u32 s13, s13, {F3_OFF}")
    NF = 224; RING = 160; SG = P.get("SG", 8); AHEAD = P.get("AHEAD", 5)
    nst = NF // SG
    def hdma(st):
        for k in range(SG//4):
            f0 = st*SG + 4*k
            p, ks = divmod(f0, 56)
            A(f"s_add_u32 m0, s15, {(f0 % RING)*1024}"); A(f"s_add_u32 s62, s{pb[p]}, {ks*1024}")
            A.vmem(f"buffer_load_dwordx4 v2, s[{SW}:{SW+3}], s62 offen sc1 lds", f"h{st}")
    A("v_add_u32 v13, 0x10000, v2"); A("v_add_u32 v14, 0x20000, v2")
    LA = 4
    def aread(f):
        base = (f % RING)*1024; vr = [2, 13, 14][base//65536]; r = 64 + 4*(f % 8)
        A(f"ds_read_b128 v[{r}:{r+3}], v{vr} offset:{base % 65536}")
    for st in range(min(AHEAD, nst)): hdma(st)
    ready = -1
    def make_ready(st):
        A.wait_tag(f"h{st}"); A("s_barrier")
        if st + AHEAD < nst: hdma(st + AHEAD)
    pend_flag = None
    A("v_mov_b32 v8, 0"); A("v_mov_b32 v7, s60")
    nread = 0
    for f in range(NF):
        p, ks = divmod(f, 56)
        while nread < min(NF, f + 1 + LA):
            st = nread // SG
            if st > ready:
                make_ready(st); ready = st
                if pend_flag is not None and "pst" not in A.vm:
                    A(f"s_add_u32 s61, s9, {pend_flag+1}"); A("s_and_b32 s61, s61, 3"); A("s_lshl_b32 s61, s61, 11"); A("s_add_u32 s61, s61, s13")
                    A("s_mov_b64 exec, 1")
                    A.vmem(f"buffer_store_dword v7, v8, s[{SW}:{SW+3}], s61 offen sc1", "f3")
                    A("s_mov_b64 exec, -1")
                    pend_flag = None
            aread(nread); nread += 1
        A(f"s_waitcnt lgkmcnt({nread - f - 1})")
        d = 16 + 16*(p & 1); r = 64 + 4*(f % 8)
        c = "0" if ks == 0 else f"v[{d}:{d+15}]"
        A(f"v_mfma_f32_32x32x16_bf16 v[{d}:{d+15}], a[{4*ks}:{4*ks+3}], v[{r}:{r+3}], {c}")
        if ks == 4 and p >= 1:
            pp = p - 1; dd = 16 + 16*(pp & 1)
            A(f"s_add_u32 s61, s9, {pp+1}"); A("s_and_b32 s61, s61, 3"); A("s_lshl_b32 s61, s61, 16"); A("s_add_u32 s61, s61, s12")
            for qd in range(4):
                A.vmem(f"buffer_store_dwordx4 v[{dd+4*qd}:{dd+4*qd+3}], v2, s[{SW}:{SW+3}], s61 offen offset:{qd*1024} sc1", "pst")
            pend_flag = pp
        if p == 3 and ks == P.get("F3AT", 20) and pend_flag is not None:
            A.wait_tag("pst")
            A(f"s_add_u32 s61, s9, {pend_flag+1}"); A("s_and_b32 s61, s61, 3"); A("s_lshl_b32 s61, s61, 11"); A("s_add_u32 s61, s61, s13")
            A("s_mov_b64 exec, 1")
            A.vmem(f"buffer_store_dword v7, v8, s[{SW}:{SW+3}], s61 offen sc1", "f3")
            A("s_mov_b64 exec, -1")
            pend_flag = None
    assert pend_flag is None
    A.stamp("g3mfma")
    A("s_lshl_b32 s61, s19, 6"); A("s_lshl_b32 s62, s9, 4"); A("s_add_u32 s61, s61, s62"); A("s_lshl_b32 s62, s3, 2"); A("s_add_u32 s61, s61, s62")
    A("s_lshl_b32 s61, s61, 7"); A(f"s_add_u32 s61, s61, {F3_OFF}")
    A("v_min_u32 v8, 2, v1"); A("v_add_u32 v8, 1, v8"); A("v_add_u32 v8, s9, v8"); A("v_and_b32 v8, 3, v8"); A("v_lshlrev_b32 v8, 7, v8")
    poll(A, "L_poll3", "v8", "s61")
    A.stamp("flags3")
    A("s_lshl_b32 s12, s19, 18"); A("s_lshl_b32 s61, s9, 16"); A("s_add_u32 s12, s12, s61"); A("s_lshl_b32 s61, s3, 12"); A("s_add_u32 s12, s12, s61")
    A(f"s_add_u32 s12, s12, {PART_OFF}")
    for k in range(3):
        A(f"s_add_u32 s61, s9, {k+1}"); A("s_and_b32 s61, s61, 3"); A("s_lshl_b32 s61, s61, 14"); A("s_add_u32 s61, s61, s12")
        for qd in range(4):
            r = 96 + 16*k + 4*qd
            A.vmem(f"buffer_load_dwordx4 v[{r}:{r+3}], v2, s[{SW}:{SW+3}], s61 offen offset:{qd*1024} sc1", f"pl{k}")
    A("v_and_b32 v9, 31, v1"); A("v_mul_u32_u24 v9, 7168, v9"); A("v_lshrrev_b32 v10, 5, v1"); A("v_lshl_add_u32 v9, v10, 4, v9")
    A("s_lshl_b32 s61, s10, 2"); A("s_add_u32 s61, s61, s18"); A(f"s_mul_i32 s61, s61, {32*7168}")
    A("s_lshl_b32 s62, s11, 8"); A("s_add_u32 s61, s61, s62"); A("s_lshl_b32 s62, s3, 6"); A("s_add_u32 s61, s61, s62")
    for k in range(3):
        A.wait_tag(f"pl{k}")
        for e in range(16): A(f"v_add_f32 v{32+e}, v{32+e}, v{96+16*k+e}")
    for e in range(8): A(f"v_cvt_pk_bf16_f32 v{64+e}, v{32+2*e}, v{33+2*e}")
    A("s_nop 1")
    A("v_permlane32_swap_b32 v64, v66"); A("v_permlane32_swap_b32 v65, v67")
    A("v_permlane32_swap_b32 v68, v70"); A("v_permlane32_swap_b32 v69, v71")
    A(f"buffer_store_dwordx4 v[64:67], v9, s[{SO}:{SO+3}], s61 offen")
    A(f"buffer_store_dwordx4 v[68:71], v9, s[{SO}:{SO+3}], s61 offen offset:32")
    if diag:
        A("s_waitcnt vmcnt(0)")
    A.stamp("end")
    A("L_fin:")
    if diag:
        A("s_lshl_b32 s61, s2, 2"); A("s_add_u32 s61, s61, s3"); A("s_lshl_b32 s61, s61, 7"); A(f"s_add_u32 s61, s61, {STAMP_OFF}")
        A("v_mov_b32 v8, 0")
        for i in range(A.nst):
            A(f"v_mov_b32 v7, s{64+2*i}"); A(f"buffer_store_dword v7, v8, s[{SW}:{SW+3}], s61 offen offset:{4*i}")
    A("L_end:"); A("s_endpgm")
    A('.section .rodata,"a"'); A(".p2align 6"); A(f".amdhsa_kernel {NAME}")
    A("  .amdhsa_next_free_vgpr 512"); A("  .amdhsa_next_free_sgpr 102"); A("  .amdhsa_accum_offset 256")
    A("  .amdhsa_group_segment_fixed_size 0"); A("  .amdhsa_kernarg_size 72"); A("  .amdhsa_user_sgpr_count 2")
    A("  .amdhsa_user_sgpr_kernarg_segment_ptr 1"); A("  .amdhsa_system_sgpr_workgroup_id_x 1"); A(".end_amdhsa_kernel")
    return A
if __name__ == "__main__":
    out = sys.argv[1]; diag = len(sys.argv) > 2 and sys.argv[2] == "diag"
    A = gen(diag); open(out, "w").write(A.text())
    if diag: print(A.stnames)
```

```python
import sys, json, importlib, amp
G = importlib.import_module(sys.argv[1]); out, nm, op, K = sys.argv[2], sys.argv[3], sys.argv[4], int(sys.argv[5])
P = json.loads(sys.argv[6]) if len(sys.argv) > 6 else {}
P["ONLY"] = [nm] if nm != "start" else []
A = G.gen(True, P); t = A.text()
idx = A.stnames.index(nm)
k = amp.amp_kernel(0, 256, 0, "min", 0, 224, idx, op, K).replace("v_lshlrev_b32 v1, 3, v1", "v_lshlrev_b32 v1, 9, v1").replace("v_lshlrev_b32 v2, 3, v2", "v_lshlrev_b32 v2, 9, v2")
L = t.split("\n")
L[0] = f"; @launch kernel={G.NAME} grid=(256,1,1) block=(256,1,1) lds=163840\n" + amp.AMP_LAUNCH
open(out, "w").write("\n".join(L) + "\n.text\n" + k)
```

```python
import sys
NAME = "standalone__weight_only_int_quip__sampling_kernel"
XR_OFF   = 0x000000
H_OFF    = 0x100000
EP_OFF   = 0x300000
F1_OFF   = 0x310000
F2_OFF   = 0x320000
F3_OFF   = 0x380000
PART_OFF = 0x1000000
STAMP_OFF = 0x800000
TAGC = 0x9E3779B9
def is_main(wg): return True
def is_H(wg): return ((wg >> 4) & 1) == 0
def is_main(wg): return (wg >> 3) < 28

class Asm:
    def __init__(self, diag=False):
        self.L = []; self.vm = []; self.diag = diag; self.stnames = ["start"]; self.clk = "s_memrealtime"; self.only = None
    def __call__(self, s): self.L.append(s)
    def text(self): return "\n".join(self.L) + "\n"
    def vmem(self, s, tag):
        if len(self.vm) >= 63: self.wait_n(62)
        self.L.append(s); self.vm.append(tag)
    def wait_n(self, n):
        if len(self.vm) > n:
            self.L.append(f"s_waitcnt vmcnt({n})"); self.vm = self.vm[len(self.vm)-n:] if n else []
    def wait_tag(self, tag):
        idx = [i for i, t in enumerate(self.vm) if t == tag]
        if idx: self.wait_n(len(self.vm) - 1 - idx[-1])
    def wait_all(self): self.wait_n(0)
    def stamp(self, name):
        if not self.diag or name not in self.only: return False
        r = 66 + 2*len(self.stnames); assert r + 1 < 102
        self.L.append(f"{self.clk} s[{r}:{r+1}]"); self.L.append("s_waitcnt lgkmcnt(0)")
        self.stnames.append(name); return True
    def emit(self, ops):
        for o in ops:
            if isinstance(o, tuple): self.vmem(o[0], o[1])
            else: self(o)

def srd(A, d, b, nbytes):
    A(f"s_mov_b32 s{d}, s{b}"); A(f"s_mov_b32 s{d+1}, s{b+1}"); A(f"s_mov_b32 s{d+2}, {nbytes}"); A(f"s_mov_b32 s{d+3}, 0x20000")

SX, SQ, SS, SZ, SU, SV, SO, SW = 24, 28, 32, 36, 40, 44, 48, 52
WS = f"s[{SW}:{SW+3}]"
def poll(A, label, voff, soff, vt="v7", slp=0):
    A("s_mov_b32 s63, 100000")
    A(f"{label}:")
    A(f"buffer_load_dword {vt}, {voff}, {WS}, {soff} offen sc1")
    A("s_sub_u32 s63, s63, 1")
    A(f"s_cbranch_scc1 {label}_x")
    A("s_waitcnt vmcnt(0)")
    A(f"v_cmp_ne_u32 vcc, s60, {vt}")
    if slp:
        A(f"s_cbranch_vccz {label}_x"); A(f"s_sleep {slp}"); A(f"s_branch {label}")
    else: A(f"s_cbranch_vccnz {label}")
    A(f"{label}_x:")
    A.vm = []
def flag_ops(soff, vz, vt, tag):
    return ["s_mov_b64 exec, 1", (f"buffer_store_dword {vt}, {vz}, {WS}, {soff} offen sc1", tag), "s_mov_b64 exec, -1"]

def gen(diag=False, P=None):
    P = dict(P or {})
    try: return gen_(diag, P)
    except AssertionError:
        P['VRATE'] = 1
        return gen_(diag, P)
def gen_(diag=False, P=None):
    P = P or {}
    A = Asm(diag); emit = A.emit
    if P.get("CYC"): A.clk = "s_memtime"
    A.only = P.get("ONLY", ["dequant","flags1","g2mfma","g2pub","vb1","flags2","f83","f167","g3mfma","pl1","pl2","end"])
    X = P.get("X", 0)
    V1 = P.get("V1", 14)
    V2 = P.get("V2", 21)
    V3 = P.get("V3", 56)
    A("; @launch grid=(256,1,1) block=(256,1,1) lds=163840")
    A('.amdgcn_target "amdgcn-amd-amdhsa--gfx950"'); A(".text")
    A(f".globl {NAME}"); A(".p2align 8"); A(f".type {NAME},@function"); A(f"{NAME}:")
    A("s_cmp_ge_u32 s2, 256"); A("s_cbranch_scc1 L_end")
    if diag:
        A(f"{A.clk} s[66:67]")
    A("s_load_dwordx16 s[4:19], s[0:1], 0")
    A("s_load_dwordx2 s[20:21], s[0:1], 64")
    A("v_lshrrev_b32 v1, 6, v0"); A("s_and_b32 s56, s2, 7"); A("v_readfirstlane_b32 s3, v1")
    A("v_and_b32 v1, 63, v0"); A("s_lshr_b32 s57, s2, 3")
    A("v_lshlrev_b32 v2, 4, v1"); A("v_and_b32 v3, 15, v1"); A("v_lshrrev_b32 v4, 4, v1")
    A("s_cmp_ge_u32 s57, 28"); A("s_cbranch_scc1 L_g1")
    A("s_and_b32 s64, s57, 1")
    A("s_lshl_b32 s58, s64, 1"); A("s_bfe_u32 s62, s57, 0x10001"); A("s_add_u32 s58, s58, s62")
    A("s_lshr_b32 s59, s57, 2"); A("s_mul_i32 s61, s56, 7"); A("s_add_u32 s59, s59, s61")
    A("v_lshrrev_b32 v8, 2, v1"); A("v_lshlrev_b32 v8, 11, v8"); A("v_and_b32 v9, 3, v1"); A("v_lshl_add_u32 v8, v9, 7, v8")
    A("v_lshlrev_b32 v9, 11, v1")
    A("v_mul_u32_u24 v5, 57344, v4"); A("v_lshl_add_u32 v5, v3, 4, v5")
    T0 = P.get("T0", 1)
    A("s_mul_i32 s61, s3, 28"); A("s_add_u32 s61, s61, s57"); A("s_mul_i32 s62, s61, 43"); A("s_lshr_b32 s62, s62, 8")
    A("s_mul_i32 s63, s62, 6"); A("s_sub_u32 s61, s61, s63"); A(f"s_add_u32 s65, s62, {T0}")
    A("s_lshl_b32 s62, s65, 2"); A("s_add_u32 s62, s62, s61"); A("s_lshl_b32 s62, s62, 15"); A("s_lshr_b32 s63, s56, 1"); A("s_lshl_b32 s63, s63, 9"); A("s_add_u32 s62, s62, s63")
    A("s_and_b32 s63, s56, 1"); A("s_lshl_b32 s63, s63, 1"); A("s_add_u32 s63, s63, s61"); A("s_sub_u32 s63, s63, 4"); A("s_lshl_b32 s63, s63, 17")
    A("s_lshl_b32 s60, s65, 7"); A("s_add_u32 s63, s63, s60")
    A("s_cmp_lt_u32 s61, 4"); A("s_cselect_b32 s23, s62, s63"); A("s_cselect_b64 vcc, -1, 0")
    A("v_cndmask_b32 v13, v9, v8, vcc")
    A("s_waitcnt lgkmcnt(0)")
    if diag:
        for i in range(1, 18): A(f"s_mov_b64 s[{66+2*i}:{67+2*i}], s[66:67]")
    A(f"s_cselect_b32 s{SU}, s12, s4"); A(f"s_cselect_b32 s{SU+1}, s13, s5"); A(f"s_mov_b32 s{SU+2}, {256*1024*2}"); A(f"s_cselect_b32 s{SU+2}, {1024*1024*2}, s{SU+2}"); A(f"s_mov_b32 s{SU+3}, 0x20000")
    A("s_mov_b32 s26, s23"); A("s_mov_b32 s27, s65")
    TB = P.get("TB", [10, 16, 16])
    def touch(k):
        if not P.get("TOUCH", 1): return
        lo = 0 if k == 0 else TB[k-1]
        A(f"s_sub_u32 s61, s27, {lo}"); A(f"s_cmp_ge_u32 s61, {TB[k]-lo}"); A(f"s_cbranch_scc1 L_td{k}")
        A(f"buffer_load_dword a255, v13, s[{SU}:{SU+3}], s26 offen")
        A(f"L_td{k}:")
    touch(0)
    if P.get("IPF", 1):
        A("s_cmp_lg_u32 s3, 3"); A("s_cbranch_scc1 L_noipf")
        A("s_sub_u32 s61, s57, 6"); A(f"s_cmp_ge_u32 s61, {P.get('IPN', 4)}"); A("s_cbranch_scc1 L_noipf")
        A("s_getpc_b64 s[22:23]"); A("L_pc:")
        A("s_lshl_b32 s61, s61, 13"); A("v_lshlrev_b32 v14, 7, v1"); A("v_add_u32 v14, s61, v14"); A("v_min_u32 v14, L_codeend-L_pc-4, v14")
        A("global_load_dword a255, v14, s[22:23]")
        A("L_noipf:")
    A("s_lshl_b32 s61, s64, 7"); A(f"s_add_u32 s61, s61, {EP_OFF}"); A("s_add_u32 s22, s20, s61"); A("s_addc_u32 s23, s21, 0")
    A("s_load_dword s60, s[22:23], 0")
    srd(A, SQ, 6, 1024*3584*4); srd(A, SS, 8, 16*3584*2); srd(A, SZ, 10, 16*3584*2)
    A(f"s_mul_i32 s7, s3, {256*14336}"); A("s_lshl_b32 s62, s59, 8"); A("s_add_u32 s7, s7, s62")
    A(f"s_mul_i32 s8, s3, {4*7168}"); A("s_lshl_b32 s62, s59, 7"); A("s_add_u32 s8, s8, s62")
    QC = P.get("QC", 2)
    def gpos(i): return (i >> 1, i & 1) if QC == 2 else (i & 3, i >> 2)
    RQ = 160
    def scload():
        A("v_lshlrev_b32 v7, 3, v3")
        for gi in range(4):
            A(f"s_add_u32 s61, s58, {gi}"); A("s_and_b32 s61, s61, 3"); A("s_mul_i32 s61, s61, 7168"); A("s_add_u32 s62, s8, s61")
            A.vmem(f"buffer_load_dwordx2 v[{144+4*gi}:{145+4*gi}], v7, s[{SS}:{SS+3}], s62 offen", "q0")
            A.vmem(f"buffer_load_dwordx2 v[{146+4*gi}:{147+4*gi}], v7, s[{SZ}:{SZ+3}], s62 offen", "q0")
    def qload(s):
        gp, sub = gpos(s)
        A(f"s_add_u32 s61, s58, {gp}"); A("s_and_b32 s61, s61, 3"); A(f"s_mul_i32 s61, s61, {64*14336}"); A("s_add_u32 s61, s61, s7")
        for i in range(8):
            row = 32*sub + 16*(i>>2) + (i&3); r = RQ + 32*(s%3) + 4*i
            A(f"s_add_u32 s62, s61, {row*14336}")
            if P.get("QD", 5) and s < P.get("QDN", 2): A.wait_n(P.get("QD", 5) - 1)
            A.vmem(f"buffer_load_dwordx4 v[{r}:{r+3}], v5, s[{SQ}:{SQ+3}], s62 offen", f"q{s}")
    if P.get("MW", 0):
        A("s_waitcnt vmcnt(0)")
        if P.get("MW", 0) > 1: A(f"s_sleep {P['MW']}")
    if P.get("MS", 0): A(f"s_sleep {P['MS']}")
    A.stamp("t1")
    if P.get("QD", 5): scload(); A.vm = []
    qload(0); touch(1)
    if not P.get("QD", 5): scload()
    srd(A, SV, 14, 3584*3584*2); srd(A, SO, 16, 256*3584*2); srd(A, SW, 20, 0x10000000)
    A("s_lshr_b32 s9, s56, 1"); A("s_and_b32 s61, s56, 1"); A("s_mul_i32 s11, s61, 14"); A("s_lshr_b32 s61, s57, 1"); A("s_add_u32 s11, s11, s61")
    A("s_mul_i32 s65, s64, 28"); A("s_add_u32 s65, s65, s11")
    A("s_lshl_b32 s12, s65, 18"); A("s_lshl_b32 s61, s9, 14"); A("s_add_u32 s12, s12, s61"); A("s_lshl_b32 s61, s3, 12"); A("s_add_u32 s12, s12, s61")
    A(f"s_add_u32 s12, s12, {PART_OFF}")
    qload(1); touch(2)
    A("v_lshlrev_b32 v6, 2, v4"); A("v_xor_b32 v6, v6, v3"); A("v_lshlrev_b32 v6, 4, v6"); A("v_mul_u32_u24 v8, 7168, v4"); A("v_add_u32 v6, v6, v8")
    A("s_mul_i32 s14, s9, 896"); A("s_lshl_b32 s61, s3, 2"); A("s_add_u32 s14, s14, s61"); A("s_mul_i32 s14, s14, 7168")
    A("s_lshl_b32 s61, s11, 8"); A("s_add_u32 s14, s14, s61")
    A(f"s_mul_i32 s61, s64, {7*16*7168}"); A("s_sub_u32 s15, s14, s61"); A("s_add_u32 s14, s14, s61")
    A("s_lshl_b32 s18, s3, 10")
    A(f"s_mul_i32 s61, s64, {7*4096}"); A("s_add_u32 s16, s18, s61"); A("s_sub_u32 s17, s18, s61")
    def vdma_ops(n):
        odd = (n // 7) & 1
        return [f"s_add_u32 m0, s{16+odd}, {(n % 28)*4096}", f"s_add_u32 s62, s{14+odd}, {n*16*7168}",
                (f"buffer_load_dwordx4 v6, s[{SV}:{SV+3}], s62 offen lds", f"V{n//14}")]
    xb = [24, 25, 26, 27, 40, 41, 42, 43]
    A("s_lshl_b32 s19, s58, 5"); A("s_lshl_b32 s61, s3, 3"); A("s_add_u32 s19, s19, s61"); A("s_lshl_b32 s19, s19, 12")
    for i in range(8):
        gp, sub = gpos(i)
        A(f"s_add_u32 s61, s58, {gp}"); A("s_and_b32 s61, s61, 3"); A("s_lshl_b32 s61, s61, 13"); A("s_add_u32 s61, s61, s19"); A(f"s_add_u32 s{xb[i]}, s61, {sub*4096 + XR_OFF}")
    A("s_lshr_b32 s10, s57, 2"); A("s_add_u32 s10, s10, s3"); A("s_and_b32 s10, s10, 3")
    A("v_and_b32 v0, 3, v1"); A("v_lshlrev_b32 v0, 7, v0")
    A("s_lshl_b32 s61, s64, 2"); A("s_add_u32 s61, s61, s3"); A("s_lshl_b32 s61, s61, 9"); A(f"s_add_u32 s20, s61, {F1_OFF}")
    REP = P.get("REP", 1)
    A("s_lshl_b32 s61, s56, 12"); A("s_add_u32 s20, s20, s61")
    A("s_waitcnt lgkmcnt(0)"); A(f"s_add_u32 s60, s60, {TAGC}")
    def dq_ops(s):
        o = []
        if QC == 1 or s % 2 == 0:
            r = 144 + 4*gpos(s)[0]
            o += [f"v_lshlrev_b32 v8, 16, v{r}", f"v_and_b32 v9, 0xffff0000, v{r}", f"v_lshlrev_b32 v10, 16, v{r+1}", f"v_and_b32 v11, 0xffff0000, v{r+1}",
                  f"v_lshlrev_b32 v12, 16, v{r+2}", f"v_and_b32 v13, 0xffff0000, v{r+2}", f"v_lshlrev_b32 v14, 16, v{r+3}", f"v_and_b32 v15, 0xffff0000, v{r+3}"]
            o += [f"v_mul_f32 v{12+t}, -v{12+t}, v{8+t}" for t in range(4)]
        q = RQ + 32*(s%3); b = 16 + 16*s
        o += [f"v_cvt_f32_i32 v{q+e}, v{q+e}" for e in range(32)]
        o.append(".p2align 3")
        for i in range(8):
            for h2 in range(2):
                r = q + 4*i + 2*h2
                o.append(f"v_pk_fma_f32 v[{r}:{r+1}], v[{r}:{r+1}], v[{8+2*h2}:{9+2*h2}], v[{12+2*h2}:{13+2*h2}]")
        for t in range(4):
            for jj in range(4):
                o.append(f"v_cvt_pk_bf16_f32 v{b+4*t+jj}, v{q+8*jj+t}, v{q+8*jj+4+t}")
        return o
    def vread_ops(ks):
        base = (ks % 28)*4096; vr = 146 + base//65536; off = base % 65536
        return [f"ds_read_b64_tr_b16 a[{4*ks}:{4*ks+1}], v{vr} offset:{off}", f"ds_read_b64_tr_b16 a[{4*ks+2}:{4*ks+3}], v{vr} offset:{off+1024}"]
    pb = [4, 5, 7, 8]
    XA = 112
    def mid(c, VL, V1, V2, V2AT, V2P):
        nv = 0
        if VL:
            while nv < min(VL, 6): emit(vdma_ops(nv)); nv += 1
            A.wait_tag("q0"); emit(dq_ops(0)); A.stamp("dq0")
            A.wait_tag("q1")
            while nv < min(VL, 10): emit(vdma_ops(nv)); nv += 1
            emit(dq_ops(1)); A.stamp("dq1")
            while nv < VL: emit(vdma_ops(nv)); nv += 1
            qload(2); qload(3); qload(4); s0 = 2
        else:
            qload(2); s0 = 0
        for s in range(s0, 8):
            A.wait_tag(f"q{s}")
            emit(dq_ops(s))
            if s + 3 < 8: qload(s+3)
            else:
                tgt = V1 if s == 7 else min(V1, VL + 5*(s-4))
                while nv < tgt: emit(vdma_ops(nv)); nv += 1
            A.stamp(f"dq{s}")
        for rp in range(4):
            A(f"s_add_u32 s62, s10, {rp}"); A("s_and_b32 s62, s62, 3"); A("s_lshl_b32 s62, s62, 10"); A(f"v_add_u32 v{8+rp}, s62, v2")
        for rp in range(1, 4):
            A(f"s_add_u32 s62, s3, {rp}"); A("s_and_b32 s62, s62, 3"); A("s_mul_i32 s62, s62, 12288"); A(f"s_add_u32 s62, s62, {0x1c000 + (rp-1)*4096}")
            A(f"v_add_u32 v{12+rp}, s62, v2")
        A("s_mul_i32 s62, s3, 12288"); A(f"s_add_u32 s62, s62, {0x1c000}"); A("v_add_u32 v12, s62, v2")
        A("v_lshlrev_b32 v144, 10, v4"); A("v_lshl_add_u32 v144, v3, 4, v144")
        A("s_lshl_b32 s61, s58, 1"); A("s_lshr_b32 s62, s10, 1"); A("s_add_u32 s61, s61, s62"); A("s_mul_i32 s61, s61, 224")
        A("s_lshl_b32 s62, s59, 2"); A("s_add_u32 s61, s61, s62"); A("s_lshl_b32 s61, s61, 10")
        A("s_and_b32 s62, s10, 1"); A("s_lshl_b32 s62, s62, 8"); A("s_add_u32 s61, s61, s62"); A(f"s_add_u32 s23, s61, {H_OFF}")
        A("s_lshl_b32 s19, s64, 2"); A("s_add_u32 s19, s19, s9"); A("s_lshl_b32 s19, s19, 12"); A(f"s_add_u32 s19, s19, {F2_OFF}")
        A("s_mul_i32 s61, s9, 14"); A("s_sub_u32 s61, s59, s61"); A("s_lshl_b32 s61, s61, 1"); A("s_and_b32 s62, s58, 1"); A("s_add_u32 s61, s61, s62")
        A("s_lshl_b32 s61, s61, 7"); A("s_add_u32 s21, s61, s19")
        A("v_lshrrev_b32 v146, 5, v1"); A("v_lshlrev_b32 v146, 11, v146"); A("v_bfe_u32 v147, v1, 2, 2"); A("v_lshl_add_u32 v146, v147, 8, v146")
        A("v_xor_b32 v147, s3, v147"); A("v_lshl_add_u32 v146, v147, 6, v146"); A("v_bfe_u32 v147, v1, 4, 1"); A("v_lshl_add_u32 v146, v147, 5, v146")
        A("v_and_b32 v147, 3, v1"); A("v_lshl_add_u32 v146, v147, 3, v146")
        A("v_add_u32 v147, 0x10000, v146")
        A.stamp("dequant")
        poll(A, f"L_poll1{c}", "v0", "s20")
        A.stamp("flags1")
        order = [(rt, s) for rt in (1, 2, 3, 0) for s in range(8)]
        aq = [(f"buffer_load_dwordx4 a[{XA+16*s+4*rt}:{XA+16*s+4*rt+3}], v{8+rt}, {WS}, s{xb[s]} offen sc1", f"a{rt}_{s}") for rt, s in order]
        for i in range(P.get("NA0", 12)): emit([aq.pop(0)])
        A("v_mov_b32 v0, 0"); A("v_mov_b32 v7, s60")
        vr_next = 0; vfree = 0
        if V2 > 28:
            assert nv == 28
            A("s_barrier")
            for ks in range(28): emit(vread_ops(ks))
            vr_next = 28
        wq = []; delay = 0; nm = 0
        for idx, (rt, s) in enumerate(order):
            A.wait_tag(f"a{rt}_{s}")
            A.stamp(f"i{idx}")
            if vr_next and idx == 8:
                A("s_waitcnt lgkmcnt(0)"); A("s_barrier"); vfree = 28
            if (rt, s) == (0, P.get("B2AT", 4)):
                while wq: A(wq.pop(0))
                A("s_waitcnt lgkmcnt(0)"); A("s_barrier")
                A.stamp("b2")
                wq = [f"ds_read_b128 v[{160+4*i}:{163+4*i}], v12 offset:{i*1024}" for i in range(12)]
            for t in range(4):
                d = 208 + 4*t if rt == 0 else 160 + ((rt-1)*4+t)*4
                acc = f"v[{d}:{d+3}]"
                c_ = "0" if s == 0 else acc
                A(f"v_mfma_f32_16x16x32_bf16 {acc}, v[{16+16*s+4*t}:{19+16*s+4*t}], a[{XA+16*s+4*rt}:{XA+16*s+4*rt+3}], {c_}")
                nm += 1
                if wq and delay <= 0: A(wq.pop(0))
                delay -= 1
                if t in (1, 3) and aq: emit([aq.pop(0)])
                elif nv < V2 and idx >= V2AT and nm % V2P == 2: emit(vdma_ops(nv)); nv += 1
            if s == 7 and rt != 0:
                wq += [f"ds_write_b128 v{12+rt}, v[{160+((rt-1)*4+t)*4}:{163+((rt-1)*4+t)*4}] offset:{t*1024}" for t in range(4)]
                delay = 8
        while wq: A(wq.pop(0))
        A.stamp("g2mfma")
        A("s_waitcnt lgkmcnt(0)")
        A(".p2align 3")
        for o in (176, 192, 208):
            for e in range(0, 16, 2): A(f"v_pk_add_f32 v[{160+e}:{161+e}], v[{160+e}:{161+e}], v[{o+e}:{o+e+1}]")
        for r in range(4):
            for h2 in range(2):
                A(f"v_cvt_pk_bf16_f32 v{224+2*r+h2}, v{160+4*(2*h2)+r}, v{160+4*(2*h2+1)+r}")
        A.vmem(f"buffer_store_dwordx4 v[224:227], v144, {WS}, s23 offen sc1", "hst")
        A.vmem(f"buffer_store_dwordx4 v[228:231], v144, {WS}, s23 offen offset:512 sc1", "hst")
        landed = (min(nv, 28) // 14) * 14
        A.wait_tag("hst")
        A("s_barrier")
        A("s_cmp_lg_u32 s3, 0"); A(f"s_cbranch_scc1 L_f2done{c}")
        A("v_lshlrev_b32 v8, 15, v1"); A("s_mov_b64 exec, 3"); A(f"buffer_store_dword v7, v8, {WS}, s21 offen sc1"); A("s_mov_b64 exec, -1")
        A(f"L_f2done{c}:")
        A.stamp("g2pub")
        while nv < min(V3, 28 + vfree): emit(vdma_ops(nv)); nv += 1
        for ks in range(vr_next, landed): emit(vread_ops(ks))
        vr_next = max(vr_next, landed)
        while vr_next < 28 or (vfree < 28 and nv < V3):
            if vr_next == vfree:
                A.wait_tag(f"V{vr_next//14}"); A("s_barrier")
                for ks in range(vr_next, vr_next + 14): emit(vread_ops(ks))
                vr_next += 14
            if nv < V3:
                A("s_waitcnt lgkmcnt(0)"); A("s_barrier"); vfree = vr_next
                while nv < min(V3, 28 + vfree): emit(vdma_ops(nv)); nv += 1
            else: vfree = vr_next
        assert nv == V3 and vr_next == 28
    vm0 = list(A.vm); st0 = list(A.stnames)
    if P.get("CL"): A("s_bitcmp1_b32 s57, 1"); A("s_cbranch_scc1 L_late")
    mid("E", *P.get("CE", [0, 14, 21, 16, 4]))
    vmE = list(A.vm)
    if P.get("CL"):
        A("s_branch L_fjoin")
        A("L_late:")
        A.vm = list(vm0); A.stnames = list(st0)
        mid("L", *P["CL"])
        A("L_fjoin:")
    lo, sh = (vmE, A.vm) if len(vmE) >= len(A.vm) else (A.vm, vmE)
    assert lo[len(lo)-len(sh):] == sh
    A.vm = list(lo); nv = V3; vr_next = 28; vis = 28
    A("s_add_u32 s10, s9, s11"); A("s_and_b32 s10, s10, 3")
    for p in range(4):
        A(f"s_add_u32 s61, s10, {p+1}"); A("s_and_b32 s61, s61, 3"); A("s_lshl_b32 s62, s64, 2"); A("s_add_u32 s61, s61, s62")
        A("s_mul_i32 s61, s61, 224"); A("s_mul_i32 s62, s9, 56"); A("s_add_u32 s61, s61, s62"); A("s_add_u32 s61, s61, s3")
        A(f"s_lshl_b32 s61, s61, 10"); A(f"s_add_u32 s{pb[p]}, s61, {H_OFF}")
    A("v_add_u32 v13, 0x10000, v2"); A("v_add_u32 v15, 0x20000, v2")
    A("s_lshl_b32 s20, s65, 18"); A("s_lshl_b32 s61, s9, 16"); A("s_add_u32 s20, s20, s61"); A("s_lshl_b32 s61, s3, 12"); A("s_add_u32 s20, s20, s61")
    A(f"s_add_u32 s20, s20, {PART_OFF}")
    A("v_min_u32 v12, 27, v1"); A("v_lshlrev_b32 v12, 7, v12")
    for k in range(3):
        if P.get("SELF"):
            A(f"s_add_u32 s61, s9, {k+1}"); A("s_and_b32 s61, s61, 3"); A("s_lshl_b32 s61, s61, 16"); A(f"s_add_u32 s{24+k}, s61, s12"); A(f"s_xor_b32 s{24+k}, s{24+k}, 0x40000")
        else:
            A(f"s_add_u32 s61, s9, {3-k}"); A("s_and_b32 s61, s61, 3"); A("s_lshl_b32 s61, s61, 14"); A(f"s_add_u32 s{24+k}, s61, s20")
    A("s_waitcnt lgkmcnt(0)")
    A.stamp("vb1")
    if REP: A("s_and_b32 s61, s56, 1"); A("s_lshl_b32 s61, s61, 15"); A("s_add_u32 s19, s19, s61")
    if P.get("ONEP", 1):
        A("s_cmp_lg_u32 s3, 3"); A("s_cbranch_scc1 L_poll2_x")
        keep = list(A.vm)
        poll(A, "L_poll2", "v12", "s19", "v14", slp=P.get("SLP", 0))
        A.vm = keep
        A("s_barrier")
    else: poll(A, "L_poll2", "v12", "s19", "v14", slp=P.get("SLP", 0))
    A.stamp("flags2")
    A("v_mul_u32_u24 v12, 37, v1"); A("v_add_u32 v12, s60, v12"); A("v_and_b32 v12, 0xff, v12"); A("s_mov_b32 s27, 0xffffff00")
    groups = []
    for kb in range(X//4):
        for p in range(3): groups.append((p, 4*kb))
    for p in range(3):
        for kb in range(X//4, 14): groups.append((p, 4*kb))
    for kb in range(14): groups.append((3, 4*kb))
    frags = [(p, k0+i) for (p, k0) in groups for i in range(4)]
    NG = len(groups); NFR = len(frags)
    SGG = P.get("SGG", 2); AH = P.get("AH", 8); AH0 = P.get("AH0", 6); AH2 = P.get("AH2", 16); LA = P.get("LA", 4)
    free = list(range(28, 40)); slot = {}
    def hdma_ops(g):
        p, k0 = groups[g]; slot[g] = free.pop(0)
        return [f"s_add_u32 m0, s18, {slot[g]*4096}", f"s_add_u32 s62, s{pb[p]}, {k0*1024}",
                (f"buffer_load_dwordx4 v2, {WS}, s62 offen sc1 lds", f"h{g}")]
    lg = []
    def ds(s_, tag): A(s_); lg.append(tag)
    def lwait(tag):
        idx = [i for i, t in enumerate(lg) if t == tag]
        if idx:
            n = min(len(lg) - 1 - idx[-1], 15)
            A(f"s_waitcnt lgkmcnt({n})"); del lg[:len(lg)-n]
    hnext = 0
    for g in range(AH0): emit(hdma_ops(g)); hnext += 1
    side = []; ready = -1; released = -1
    vrel = set()
    last_of_pass = {}
    for i, (p, ks) in enumerate(frags): last_of_pass[p] = i
    needf = {b: min(i for i, (p_, k_) in enumerate(frags) if k_ >= 14*b) for b in (2, 3)}
    nread = 0
    VRATE = P.get("VRATE", 2)
    S0 = P.get("S0", 2); CF = P.get("CF", 64); PE = P.get("PE", 100); PW = P.get("PW", 12)
    PLS = P.get("PLS", [125, 166, 212])
    srcb = [24, 25, 26]; vq_ = []; PSTF = P.get("PSTF", "sc1")
    def pload(k):
        return [[(f"buffer_load_dwordx4 v[{192+16*k+4*qd}:{195+16*k+4*qd}], v2, {WS}, s{srcb[k]} offen offset:{qd*1024} sc1", f"pl{k}")] for qd in range(4)]
    for f, (p, ks) in enumerate(frags):
        while nread < min(NFR, f + 1 + LA):
            g = nread // 4
            if g > ready:
                tgt = min(NG - 1, g + SGG - 1)
                while hnext <= tgt: emit(hdma_ops(hnext)); hnext += 1
                A.wait_tag(f"h{tgt}")
                for b in (2, 3):
                    if nv >= 14*(b+1) and f >= needf[b] - 4*SGG - 6: A.wait_tag(f"V{b}")
                A("s_barrier")
                ready = tgt
                while released < f // 4 - 1:
                    released += 1; free.append(slot[released])
                for b in (2, 3):
                    if nv >= 14*(b+1) and f"V{b}" not in A.vm: vis = max(vis, 14*(b+1))
                    if b not in vrel and vr_next >= 14*(b+1) and not any(t == f"W{k}" for t in lg for k in range(14*b, 14*b+14)):
                        vrel.add(b); free.extend(range(14*(b-2), 14*(b-2)+14))
            r = 96 + 4*(nread % 8); base = slot[g]*4096 + (nread % 4)*1024
            ds(f"ds_read_b128 v[{r}:{r+3}], v{[2,13,15][base//65536]} offset:{base % 65536}", f"A{nread}")
            nread += 1
        while vr_next <= ks:
            assert vr_next < vis, (f, ks, vr_next, vis)
            for o in vread_ops(vr_next): ds(o, f"W{vr_next}")
            vr_next += 1
        lwait(f"W{ks}")
        lwait(f"A{f}")
        d = 16 + 16*p; r = 96 + 4*(f % 8)
        c = "0" if ks == 0 else f"v[{d}:{d+15}]"
        A(f"v_mfma_f32_32x32x16_bf16 v[{d}:{d+15}], a[{4*ks}:{4*ks+3}], v[{r}:{r+3}], {c}")
        if A.stamp(f"f{f}"): lg.clear()
        did = False
        ah = AH2 if nv == 56 else AH
        hok = hnext < NG and hnext <= ready + ah and free
        VW = P.get("VW")
        if VW and nv < 56 and any(a_ <= f < a_ + n_ for a_, n_ in VW):
            emit(vdma_ops(nv)); nv += 1; did = True
        if not did and side and (f % 2 == 0 or not hok):
            emit(side.pop(0)); did = True
        if not did and hok:
            emit(hdma_ops(hnext)); hnext += 1; did = True
        if not did and not VW and nv < 56 and f % VRATE == 0:
            emit(vdma_ops(nv)); nv += 1; did = True
        for _ in range(2):
            if vq_: A(vq_.pop(0))
        if vr_next < vis:
            for o in vread_ops(vr_next): ds(o, f"W{vr_next}")
            vr_next += 1
        for pp in range(3):
            dd = 16 + 16*pp
            if f == last_of_pass[pp] + 4:
                vq_ += [f"v_and_or_b32 v{dd+e}, v{dd+e}, s27, v12" for e in range(16)]
            if f == last_of_pass[pp] + 7:
                side.append([f"s_add_u32 s61, s9, {pp+1}", "s_and_b32 s61, s61, 3", "s_lshl_b32 s61, s61, 16", "s_add_u32 s22, s61, s12",
                             (f"buffer_store_dwordx4 v[{dd}:{dd+3}], v2, {WS}, s22 offen {PSTF}", f"pst{pp}")])
            for qd in range(1, 4):
                if f == last_of_pass[pp] + 7 + 2*qd:
                    side.append([(f"buffer_store_dwordx4 v[{dd+4*qd}:{dd+4*qd+3}], v2, {WS}, s22 offen offset:{qd*1024} {PSTF}", f"pst{pp}")])
        for k in range(3):
            if f == PLS[k]: side.extend(pload(k))
    while side: emit(side.pop(0))
    assert nv == 56 and vr_next == 56 and hnext == NG
    A.stamp("g3mfma")
    A("v_and_b32 v9, 31, v1"); A("v_mul_u32_u24 v9, 7168, v9"); A("v_lshrrev_b32 v10, 5, v1"); A("v_lshl_add_u32 v9, v10, 4, v9")
    A("s_lshl_b32 s61, s64, 2"); A("s_add_u32 s61, s61, s10"); A(f"s_mul_i32 s61, s61, {32*7168}")
    A("s_lshl_b32 s62, s11, 8"); A("s_add_u32 s61, s61, s62"); A("s_lshl_b32 s62, s3, 6"); A("s_add_u32 s23, s61, s62")
    for k in range(3):
        A(f"s_mov_b32 s63, {2000 if P.get('SELF') else 100000}")
        b = 192 + 16*k
        A.wait_tag(f"pl{k}")
        A(f"L_chk{k}:")
        for e in range(16): A(f"v_xor_b32 v{176+e}, v{b+e}, v12")
        A("v_or3_b32 v10, v176, v177, v178"); A("v_or3_b32 v11, v179, v180, v181")
        for e in range(182, 190, 4):
            A(f"v_or3_b32 v10, v10, v{e}, v{e+1}"); A(f"v_or3_b32 v11, v11, v{e+2}, v{e+3}")
        A("v_or3_b32 v10, v10, v190, v191"); A("v_or_b32 v10, v10, v11"); A("v_and_b32 v10, 0xff, v10")
        A("v_cmp_ne_u32 vcc, 0, v10")
        A(f"s_cbranch_vccz L_chk{k}_x")
        A("s_sub_u32 s63, s63, 1"); A(f"s_cbranch_scc1 L_chk{k}_x")
        for qd in range(4): A(f"buffer_load_dwordx4 v[{b+4*qd}:{b+4*qd+3}], v2, {WS}, s{24+k} offen offset:{qd*1024} sc1")
        A("s_waitcnt vmcnt(0)")
        A(f"s_branch L_chk{k}")
        A(f"L_chk{k}_x:")
        A.stamp(f"pl{k}")
        A(".p2align 3")
        for e in range(0, 16, 2): A(f"v_pk_add_f32 v[{64+e}:{65+e}], v[{64+e}:{65+e}], v[{176+e}:{177+e}]")
    for e in range(8): A(f"v_cvt_pk_bf16_f32 v{96+e}, v{64+2*e}, v{65+2*e}")
    A("s_nop 1")
    A("v_permlane32_swap_b32 v96, v98"); A("v_permlane32_swap_b32 v97, v99")
    A("v_permlane32_swap_b32 v100, v102"); A("v_permlane32_swap_b32 v101, v103")
    A(f"buffer_store_dwordx4 v[96:99], v9, s[{SO}:{SO+3}], s23 offen {P.get('OST','')}")
    A(f"buffer_store_dwordx4 v[100:103], v9, s[{SO}:{SO+3}], s23 offen offset:32 {P.get('OST','')}")
    A("s_lshr_b32 s61, s57, 1"); A("s_or_b32 s61, s61, s56"); A("s_or_b32 s61, s61, s3"); A("s_cmp_lg_u32 s61, 0"); A("s_cbranch_scc1 L_noep")
    A("s_lshl_b32 s61, s64, 7"); A(f"s_add_u32 s61, s61, {EP_OFF}")
    emit(flag_ops("s61", "v0", "v7", "x"))
    A("L_noep:")
    if diag: A("s_waitcnt vmcnt(0)")
    A.stamp("end")
    A("s_branch L_fin")
    A("L_g1:")
    A.vm = []
    A("s_and_b32 s64, s56, 1")
    A("s_lshr_b32 s59, s56, 1"); A("s_lshl_b32 s59, s59, 2"); A("s_add_u32 s59, s59, s57"); A("s_sub_u32 s59, s59, 28")
    A("v_lshrrev_b32 v11, 3, v1"); A("v_and_b32 v12, 7, v1"); A("v_and_b32 v13, 2, v11"); A("v_xor_b32 v13, v12, v13")
    A("v_lshlrev_b32 v14, 11, v11"); A("v_lshl_add_u32 v9, v13, 4, v14"); A("v_xor_b32 v10, 64, v9")
    A("v_lshrrev_b32 v13, 1, v11"); A("v_xor_b32 v13, v12, v13"); A("v_lshl_add_u32 v8, v13, 4, v14"); A("v_xor_b32 v11, 64, v8")
    A("s_lshl_b32 s58, s3, 15"); A("s_lshl_b32 s62, s59, 7"); A("s_add_u32 s58, s58, s62")
    A("s_lshl_b32 s65, s64, 2"); A("s_add_u32 s65, s65, s3"); A("s_lshl_b32 s65, s65, 16")
    A("s_waitcnt lgkmcnt(0)")
    if diag:
        for i in range(1, 18): A(f"s_mov_b64 s[{66+2*i}:{67+2*i}], s[66:67]")
    srd(A, SX, 4, 256*1024*2); srd(A, SU, 12, 1024*1024*2)
    A("s_lshl_b32 s4, s3, 11"); A("s_lshl_b32 s5, s3, 12"); A("s_add_u32 s5, s5, 8192")
    NS = 6; STG = 24576; G1D = P.get("G1D", 3)
    def g1_ops(st):
        o = []
        for i in range(2):
            o.append([f"s_add_u32 m0, s4, {(st % NS)*STG + i*1024}", f"s_add_u32 s62, s58, {st*64*2048 + i*8*2048}",
                      (f"buffer_load_dwordx4 v{9+i}, s[{SU}:{SU+3}], s62 offen lds", f"g{st}")])
        for i in range(4):
            o.append([f"s_add_u32 m0, s5, {(st % NS)*STG + i*1024}", f"s_add_u32 s62, s65, {st*128 + i*8*2048}",
                      (f"buffer_load_dwordx4 v{[8,11][i&1]}, s[{SX}:{SX+3}], s62 offen lds", f"g{st}")])
        return o
    for st in range(G1D):
        for o in g1_ops(st): emit(o)
    A("s_lshl_b32 s61, s64, 7"); A(f"s_add_u32 s61, s61, {EP_OFF}"); A("s_add_u32 s22, s20, s61"); A("s_addc_u32 s23, s21, 0")
    A("s_load_dword s60, s[22:23], 0")
    srd(A, SV, 14, 3584*3584*2); srd(A, SW, 20, 0x10000000)
    A("v_lshrrev_b32 v50, 2, v3"); A("v_and_b32 v51, 3, v3"); A("v_lshlrev_b32 v52, 10, v4")
    A("v_lshl_add_u32 v52, v50, 7, v52"); A("v_lshl_add_u32 v52, v51, 3, v52")
    A("v_lshrrev_b32 v53, 1, v50"); A("v_and_b32 v51, 1, v4"); A("v_lshl_add_u32 v53, v51, 1, v53"); A("v_lshlrev_b32 v53, 5, v53")
    for t in range(4):
        A(f"v_xor_b32 v{16+3*t}, {32*t}, v53"); A(f"v_add_u32 v{16+3*t}, v{16+3*t}, v52")
        A(f"v_add_u32 v{17+3*t}, {2*STG}, v{16+3*t}"); A(f"v_add_u32 v{18+3*t}, {4*STG}, v{16+3*t}")
    A("v_lshrrev_b32 v50, 1, v3"); A("v_xor_b32 v50, v50, v4"); A("v_lshlrev_b32 v50, 4, v50"); A("v_lshl_add_u32 v50, v3, 7, v50")
    A("v_add_u32 v28, s5, v50"); A("v_xor_b32 v50, 64, v50"); A("v_add_u32 v31, s5, v50")
    for par in range(2):
        A(f"v_add_u32 v{29+3*par}, {2*STG}, v{28+3*par}"); A(f"v_add_u32 v{30+3*par}, {4*STG}, v{28+3*par}")
    A("s_waitcnt lgkmcnt(0)"); A(f"s_add_u32 s60, s60, {TAGC}")
    def g1reads(s):
        st = s // 2; win = (st % NS)//2; o0 = ((st % NS) % 2)*STG; b = 112 + 16*(s&1); xa = 96 + 8*(s&1)
        o = [f"ds_read_b128 v[{xa+4*rt}:{xa+4*rt+3}], v{28+3*(s&1)+win} offset:{o0 + rt*2048}" for rt in range(2)]
        for t in range(4):
            o.append(f"ds_read_b64_tr_b16 v[{b+4*t}:{b+4*t+1}], v{16+3*t+win} offset:{o0 + (s&1)*4096}")
            o.append(f"ds_read_b64_tr_b16 v[{b+4*t+2}:{b+4*t+3}], v{16+3*t+win} offset:{o0 + (s&1)*4096 + 512}")
        return o
    A.wait_tag("g0"); A("s_barrier")
    A.stamp("g1s0")
    for o in g1reads(0): A(o)
    dq_ = []
    for s in range(32):
        if s % 2 == 0 and s//2 + G1D < 16: dq_ += g1_ops(s//2 + G1D)
        rd = []
        if s + 1 < 32:
            if (s + 1) % 2 == 0:
                A.wait_tag(f"g{(s+1)//2}"); A("s_barrier")
            rd = g1reads(s + 1)
        A("s_waitcnt lgkmcnt(0)")
        b = 112 + 16*(s&1); xa = 96 + 8*(s&1)
        for t in range(4):
            for rt in range(2):
                d = 64 + (rt*4+t)*4
                c = "0" if s == 0 else f"v[{d}:{d+3}]"
                A(f"v_mfma_f32_16x16x32_bf16 v[{d}:{d+3}], v[{b+4*t}:{b+4*t+3}], v[{xa+4*rt}:{xa+4*rt+3}], {c}")
                k = t*2 + rt
                if k < 5:
                    for _ in range(2):
                        if rd: A(rd.pop(0))
                elif dq_: emit(dq_.pop(0))
        A.stamp(f"g1s{s+1}")
    A.stamp("g1mfma")
    A("s_lshl_b32 s61, s64, 1"); A("s_lshr_b32 s62, s3, 1"); A("s_add_u32 s61, s61, s62"); A("s_lshl_b32 s61, s61, 5")
    A("s_lshl_b32 s62, s59, 1"); A("s_add_u32 s61, s61, s62"); A("s_lshl_b32 s61, s61, 2"); A("s_and_b32 s62, s3, 1"); A("s_lshl_b32 s62, s62, 1")
    A("s_add_u32 s61, s61, s62"); A("s_lshl_b32 s61, s61, 10"); A("s_add_u32 s62, s61, 4096")
    for e in range(16): A(f"v_cvt_pk_bf16_f32 v{96+e}, v{64+2*e}, v{65+2*e}")
    for rt in range(2):
        for sp in range(2):
            r = 96 + rt*8 + sp*4
            A.vmem(f"buffer_store_dwordx4 v[{r}:{r+3}], v2, {WS}, s{61+sp} offen offset:{rt*1024} sc1", "xst")
    A("s_lshl_b32 s61, s64, 4"); A("s_add_u32 s61, s61, s59"); A("s_lshl_b32 s61, s61, 7"); A(f"s_add_u32 s61, s61, {F1_OFF}")
    A("v_mov_b32 v8, 0"); A("v_mov_b32 v7, s60")
    A.wait_all(); A("s_barrier")
    A("s_cmp_lg_u32 s3, 0"); A("s_cbranch_scc1 L_f1done")
    if REP:
        A("v_lshlrev_b32 v8, 12, v1"); A("s_mov_b64 exec, 0xff"); A(f"buffer_store_dword v7, v8, {WS}, s61 offen sc1"); A("s_mov_b64 exec, -1")
    else: emit(flag_ops("s61", "v8", "v7", "x"))
    A("L_f1done:")
    A.stamp("g1pub")
    R0 = P.get("SPR0", 448); NR = P.get("SPN", 14)
    if NR:
        A("v_cmp_lt_u32 vcc, 27, v1"); A("s_nop 1"); A("v_cndmask_b32 v8, 0, 1, vcc"); A("v_mul_u32_u24 v9, 28, v8"); A("v_sub_u32 v9, v1, v9")
        A("v_lshlrev_b32 v9, 7, v9"); A("v_mul_u32_u24 v8, 7168, v8"); A("v_add_u32 v8, v8, v9")
        A("s_sub_u32 s61, s57, 28"); A("s_lshl_b32 s61, s61, 2"); A("s_add_u32 s61, s61, s3"); A("s_lshl_b32 s61, s61, 1")
        A("s_lshr_b32 s62, s56, 1"); A("s_mul_i32 s62, s62, 896"); A("s_add_u32 s61, s61, s62"); A(f"s_add_u32 s61, s61, {R0}"); A("s_mul_i32 s61, s61, 7168")
        A("s_mul_i32 s62, s64, 3584"); A("s_add_u32 s61, s61, s62")
        A("s_mov_b32 exec_hi, 0xffffff")
        for i in range(NR):
            A(f"buffer_load_dword v{10+(i&1)}, v8, s[{SV}:{SV+3}], s61 offen")
            A(f"s_add_u32 s61, s61, {32*7168}")
            A("s_waitcnt vmcnt(1)")
        A("s_mov_b64 exec, -1")
    A("L_fin:")
    if diag:
        A("s_lshl_b32 s61, s2, 2"); A("s_add_u32 s61, s61, s3"); A("s_lshl_b32 s61, s61, 7"); A(f"s_add_u32 s61, s61, {STAMP_OFF}")
        A("v_mov_b32 v8, 0")
        for i in range(len(A.stnames)):
            A(f"v_mov_b32 v7, s{66+2*i}"); A(f"buffer_store_dword v7, v8, {WS}, s61 offen offset:{4*i}")
    A("L_end:"); A("s_endpgm"); A("L_codeend:")
    A('.section .rodata,"a"'); A(".p2align 6"); A(f".amdhsa_kernel {NAME}")
    A("  .amdhsa_next_free_vgpr 512"); A("  .amdhsa_next_free_sgpr 102"); A("  .amdhsa_accum_offset 256")
    A("  .amdhsa_group_segment_fixed_size 0"); A("  .amdhsa_kernarg_size 72"); A("  .amdhsa_user_sgpr_count 2")
    A("  .amdhsa_user_sgpr_kernarg_segment_ptr 1"); A("  .amdhsa_system_sgpr_workgroup_id_x 1"); A(".end_amdhsa_kernel")
    return A
if __name__ == "__main__":
    import json
    out = sys.argv[1]; diag = len(sys.argv) > 2 and sys.argv[2] == "diag"
    P = json.loads(sys.argv[3]) if len(sys.argv) > 3 else {}
    A = gen(diag, P); open(out, "w").write(A.text())
    if diag: print(A.stnames)
```

```python
import sys
NAME = "standalone__weight_only_int_quip__sampling_kernel"
XR_OFF   = 0x000000
H_OFF    = 0x100000
EP_OFF   = 0x300000
F1_OFF   = 0x310000
F2_OFF   = 0x320000
F3_OFF   = 0x380000
PART_OFF = 0x1000000
STAMP_OFF = 0x800000
TAGC = 0x9E3779B9
def is_main(wg): return True
def is_H(wg): return ((wg >> 4) & 1) == 0
def is_main(wg): return (wg >> 3) < 28

class Asm:
    def __init__(self, diag=False):
        self.L = []; self.vm = []; self.diag = diag; self.stnames = ["start"]; self.clk = "s_memrealtime"; self.only = None
    def __call__(self, s): self.L.append(s)
    def text(self): return "\n".join(self.L) + "\n"
    def vmem(self, s, tag):
        if len(self.vm) >= 63: self.wait_n(62)
        self.L.append(s); self.vm.append(tag)
    def wait_n(self, n):
        if len(self.vm) > n:
            self.L.append(f"s_waitcnt vmcnt({n})"); self.vm = self.vm[len(self.vm)-n:] if n else []
    def wait_tag(self, tag):
        idx = [i for i, t in enumerate(self.vm) if t == tag]
        if idx: self.wait_n(len(self.vm) - 1 - idx[-1])
    def wait_all(self): self.wait_n(0)
    def stamp(self, name):
        if not self.diag or name not in self.only: return False
        r = 66 + 2*len(self.stnames); assert r + 1 < 102
        self.L.append(f"{self.clk} s[{r}:{r+1}]"); self.L.append("s_waitcnt lgkmcnt(0)")
        self.stnames.append(name); return True
    def emit(self, ops):
        for o in ops:
            if isinstance(o, tuple): self.vmem(o[0], o[1])
            else: self(o)

def srd(A, d, b, nbytes):
    A(f"s_mov_b32 s{d}, s{b}"); A(f"s_mov_b32 s{d+1}, s{b+1}"); A(f"s_mov_b32 s{d+2}, {nbytes}"); A(f"s_mov_b32 s{d+3}, 0x20000")

SX, SQ, SS, SZ, SU, SV, SO, SW = 24, 28, 32, 36, 40, 44, 48, 52
WS = f"s[{SW}:{SW+3}]"
def poll(A, label, voff, soff, vt="v7", slp=0, pre=False):
    A("s_mov_b32 s63, 100000")
    if pre: A(f"s_branch {label}_w")
    A(f"{label}:")
    A(f"buffer_load_dword {vt}, {voff}, {WS}, {soff} offen sc1")
    A(f"{label}_w:")
    A("s_sub_u32 s63, s63, 1")
    A(f"s_cbranch_scc1 {label}_x")
    A("s_waitcnt vmcnt(0)")
    A(f"v_cmp_ne_u32 vcc, s60, {vt}")
    if slp:
        A(f"s_cbranch_vccz {label}_x"); A(f"s_sleep {slp}"); A(f"s_branch {label}")
    else: A(f"s_cbranch_vccnz {label}")
    A(f"{label}_x:")
    A.vm = []
def flag_ops(soff, vz, vt, tag):
    return ["s_mov_b64 exec, 1", (f"buffer_store_dword {vt}, {vz}, {WS}, {soff} offen sc1", tag), "s_mov_b64 exec, -1"]

def gen(diag=False, P=None):
    P = dict(P or {})
    return gen_(diag, P)
def gen_(diag=False, P=None):
    P = P or {}
    A = Asm(diag); emit = A.emit
    if P.get("CYC"): A.clk = "s_memtime"
    A.only = P.get("ONLY", ["dequant","flags1","g2mfma","g2pub","vb1","flags2","f0","f40","f83","f167","g3mfma","pl2","end"])
    X = P.get("X", 0)
    V1 = P.get("V1", 14)
    V2 = P.get("V2", 21)
    V3 = P.get("V3", 56)
    A("; @launch grid=(256,1,1) block=(256,1,1) lds=163840")
    A('.amdgcn_target "amdgcn-amd-amdhsa--gfx950"'); A(".text")
    A(f".globl {NAME}"); A(".p2align 8"); A(f".type {NAME},@function"); A(f"{NAME}:")
    A("s_cmp_ge_u32 s2, 256"); A("s_cbranch_scc1 L_end")
    if diag:
        A(f"{A.clk} s[66:67]")
    A("s_load_dwordx16 s[4:19], s[0:1], 0")
    A("s_load_dwordx2 s[20:21], s[0:1], 64")
    if (0 if P.get("TM") else P.get("IPF", 3)) == 2:
        A("s_getpc_b64 s[22:23]"); A("L_pc:")
        A("s_and_b32 s57, s2, 0xf8"); A("v_lshrrev_b32 v1, 5, v0"); A("v_add_lshl_u32 v1, v1, s57, 7"); A("v_min_u32 v1, L_codeend-L_pc-4, v1")
        A("global_load_dword a255, v1, s[22:23]")
    A("v_lshrrev_b32 v1, 6, v0"); A("s_and_b32 s56, s2, 7"); A("v_readfirstlane_b32 s3, v1")
    A("v_and_b32 v1, 63, v0"); A("s_lshr_b32 s57, s2, 3")
    A("v_lshlrev_b32 v2, 4, v1"); A("v_and_b32 v3, 15, v1"); A("v_lshrrev_b32 v4, 4, v1")
    A("s_cmp_ge_u32 s57, 28"); A("s_cbranch_scc1 L_g1")
    if (0 if P.get("TM") else P.get("IPF", 3)) == 3:
        A("s_cmp_lg_u32 s3, 3"); A("s_cbranch_scc1 L_noipf")
        A("s_sub_u32 s61, s57, 6"); A(f"s_cmp_ge_u32 s61, {P.get('IPN', 4)}"); A("s_cbranch_scc1 L_noipf")
        A("s_getpc_b64 s[22:23]"); A("L_pc:")
        A("s_lshl_b32 s61, s61, 13"); A("v_lshlrev_b32 v14, 7, v1"); A("v_add_u32 v14, s61, v14"); A("v_min_u32 v14, L_codeend-L_pc-4, v14")
        A("global_load_dword a255, v14, s[22:23]")
        A("L_noipf:")
    A("s_and_b32 s64, s57, 1")
    A("s_lshl_b32 s58, s64, 1"); A("s_bfe_u32 s62, s57, 0x10001"); A("s_add_u32 s58, s58, s62")
    A("s_lshr_b32 s59, s57, 2"); A("s_mul_i32 s61, s56, 7"); A("s_add_u32 s59, s59, s61")
    A("v_lshrrev_b32 v8, 2, v1"); A("v_lshlrev_b32 v8, 11, v8"); A("v_and_b32 v9, 3, v1"); A("v_lshl_add_u32 v8, v9, 7, v8")
    A("v_lshlrev_b32 v9, 11, v1")
    A("v_mul_u32_u24 v5, 57344, v4"); A("v_lshl_add_u32 v5, v3, 4, v5")
    T0 = P.get("T0", 1)
    if P.get("TM"):
        A("s_lshr_b32 s61, s57, 2"); A("s_add_u32 s62, s56, 1"); A("s_and_b32 s62, s62, 3"); A("s_sub_u32 s62, s61, s62")
        A("s_cmp_gt_i32 s62, 0"); A("s_subb_u32 s61, s61, 0"); A("s_cmp_gt_i32 s62, 4"); A("s_subb_u32 s61, s61, 0")
        A("s_lshl_b32 s61, s61, 2"); A("s_and_b32 s63, s57, 3"); A("s_add_u32 s61, s61, s63")
        A("s_lshl_b32 s60, s3, 3"); A("s_add_u32 s63, s63, s60"); A("s_cmp_gt_i32 s62, 0"); A("s_cselect_b32 s60, 0, 4"); A("s_add_u32 s60, s60, 78"); A("s_add_u32 s60, s60, s63")
        A("s_and_b32 s62, s62, 3"); A("s_cselect_b32 s61, s61, 20")
        A("s_mul_i32 s62, s3, 20"); A("s_add_u32 s62, s62, s61"); A("s_cmp_lt_u32 s61, 20"); A("s_cselect_b32 s61, s62, s60"); A("s_cselect_b32 s62, s62, 0")
        A("s_sub_u32 s62, s62, 78"); A("s_cmp_ge_u32 s62, 2"); A("s_cbranch_scc1 L_noipf")
        A("s_mov_b32 s61, 120")
        A("s_getpc_b64 s[22:23]"); A("L_pc:")
        A("s_lshl_b32 s62, s62, 14"); A("v_lshlrev_b32 v14, 7, v1"); A("v_add_u32 v14, s62, v14"); A("v_add_u32 v15, 0x2000, v14"); A("v_min_u32 v15, L_codeend-L_pc-4, v15")
        A("global_load_dword a255, v14, s[22:23]"); A("global_load_dword a255, v15, s[22:23]")
        A("L_noipf:")
    else:
        A("s_mul_i32 s61, s3, 28"); A("s_add_u32 s61, s61, s57")
    A("s_mul_i32 s62, s61, 43"); A("s_lshr_b32 s62, s62, 8")
    A("s_mul_i32 s63, s62, 6"); A("s_sub_u32 s61, s61, s63"); A(f"s_add_u32 s65, s62, {T0}")
    A("s_lshl_b32 s62, s65, 2"); A("s_add_u32 s62, s62, s61"); A("s_lshl_b32 s62, s62, 15"); A("s_lshr_b32 s63, s56, 1"); A("s_lshl_b32 s63, s63, 9"); A("s_add_u32 s62, s62, s63")
    A("s_and_b32 s63, s56, 1"); A("s_lshl_b32 s63, s63, 1"); A("s_add_u32 s63, s63, s61"); A("s_sub_u32 s63, s63, 4"); A("s_lshl_b32 s63, s63, 17")
    A("s_lshl_b32 s60, s65, 7"); A("s_add_u32 s63, s63, s60")
    A("s_cmp_lt_u32 s61, 4"); A("s_cselect_b32 s23, s62, s63"); A("s_cselect_b64 vcc, -1, 0")
    A("v_cndmask_b32 v13, v9, v8, vcc")
    A("s_waitcnt lgkmcnt(0)")
    if diag:
        for i in range(1, 18): A(f"s_mov_b64 s[{66+2*i}:{67+2*i}], s[66:67]")
    A(f"s_cselect_b32 s{SU}, s12, s4"); A(f"s_cselect_b32 s{SU+1}, s13, s5"); A(f"s_mov_b32 s{SU+2}, {256*1024*2}"); A(f"s_cselect_b32 s{SU+2}, {1024*1024*2}, s{SU+2}"); A(f"s_mov_b32 s{SU+3}, 0x20000")
    A("s_mov_b32 s26, s23"); A("s_mov_b32 s27, s65")
    TB = P.get("TB", [10, 16, 16])
    def touch(k):
        if not P.get("TOUCH", 1): return
        lo = 0 if k == 0 else TB[k-1]
        A(f"s_sub_u32 s61, s27, {lo}"); A(f"s_cmp_ge_u32 s61, {TB[k]-lo}"); A(f"s_cbranch_scc1 L_td{k}")
        A(f"buffer_load_dword a255, v13, s[{SU}:{SU+3}], s26 offen")
        A(f"L_td{k}:")
    touch(0)
    if (0 if P.get("TM") else P.get("IPF", 3)) == 1:
        A("s_cmp_lg_u32 s3, 3"); A("s_cbranch_scc1 L_noipf")
        A("s_sub_u32 s61, s57, 6"); A(f"s_cmp_ge_u32 s61, {P.get('IPN', 4)}"); A("s_cbranch_scc1 L_noipf")
        A("s_getpc_b64 s[22:23]"); A("L_pc:")
        A("s_lshl_b32 s61, s61, 13"); A("v_lshlrev_b32 v14, 7, v1"); A("v_add_u32 v14, s61, v14"); A("v_min_u32 v14, L_codeend-L_pc-4, v14")
        A("global_load_dword a255, v14, s[22:23]")
        A("L_noipf:")
    A("s_lshl_b32 s61, s64, 7"); A(f"s_add_u32 s61, s61, {EP_OFF}"); A("s_add_u32 s22, s20, s61"); A("s_addc_u32 s23, s21, 0")
    A("s_load_dword s60, s[22:23], 0")
    srd(A, SQ, 6, 1024*3584*4); srd(A, SS, 8, 16*3584*2); srd(A, SZ, 10, 16*3584*2)
    A(f"s_mul_i32 s7, s3, {256*14336}"); A("s_lshl_b32 s62, s59, 8"); A("s_add_u32 s7, s7, s62")
    A(f"s_mul_i32 s8, s3, {4*7168}"); A("s_lshl_b32 s62, s59, 7"); A("s_add_u32 s8, s8, s62")
    QC = P.get("QC", 2)
    def gpos(i): return (i >> 1, i & 1) if QC == 2 else (i & 3, i >> 2)
    RQ = 160
    def scload():
        A("v_lshlrev_b32 v7, 3, v3")
        for gi in range(4):
            A(f"s_add_u32 s61, s58, {gi}"); A("s_and_b32 s61, s61, 3"); A("s_mul_i32 s61, s61, 7168"); A("s_add_u32 s62, s8, s61")
            A.vmem(f"buffer_load_dwordx2 v[{144+4*gi}:{145+4*gi}], v7, s[{SS}:{SS+3}], s62 offen", "q0")
            A.vmem(f"buffer_load_dwordx2 v[{146+4*gi}:{147+4*gi}], v7, s[{SZ}:{SZ+3}], s62 offen", "q0")
    def qload(s):
        gp, sub = gpos(s)
        A(f"s_add_u32 s61, s58, {gp}"); A("s_and_b32 s61, s61, 3"); A(f"s_mul_i32 s61, s61, {64*14336}"); A("s_add_u32 s61, s61, s7")
        for i in range(8):
            row = 32*sub + 16*(i>>2) + (i&3); r = RQ + 32*(s%3) + 4*i
            A(f"s_add_u32 s62, s61, {row*14336}")
            if P.get("QD", 5) and s < P.get("QDN", 2): A.wait_n(P.get("QD", 5) - 1)
            A.vmem(f"buffer_load_dwordx4 v[{r}:{r+3}], v5, s[{SQ}:{SQ+3}], s62 offen", f"q{s}")
    if P.get("MW", 0):
        A("s_waitcnt vmcnt(0)")
        if P.get("MW", 0) > 1: A(f"s_sleep {P['MW']}")
    if P.get("MS", 0): A(f"s_sleep {P['MS']}")
    A.stamp("t1")
    if P.get("QD", 5): scload(); A.vm = []
    qload(0); touch(1)
    if not P.get("QD", 5): scload()
    srd(A, SV, 14, 3584*3584*2); srd(A, SO, 16, 256*3584*2); srd(A, SW, 20, 0x10000000)
    A("s_lshr_b32 s9, s56, 1"); A("s_and_b32 s61, s56, 1"); A("s_mul_i32 s11, s61, 14"); A("s_lshr_b32 s61, s57, 1"); A("s_add_u32 s11, s11, s61")
    A("s_mul_i32 s65, s64, 28"); A("s_add_u32 s65, s65, s11")
    A("s_lshl_b32 s12, s65, 18"); A("s_lshl_b32 s61, s9, 14"); A("s_add_u32 s12, s12, s61"); A("s_lshl_b32 s61, s3, 12"); A("s_add_u32 s12, s12, s61")
    A(f"s_add_u32 s12, s12, {PART_OFF}")
    qload(1); touch(2)
    A("v_lshlrev_b32 v6, 2, v4"); A("v_xor_b32 v6, v6, v3"); A("v_lshlrev_b32 v6, 4, v6"); A("v_mul_u32_u24 v8, 7168, v4"); A("v_add_u32 v6, v6, v8")
    A("s_mul_i32 s14, s9, 896"); A("s_lshl_b32 s61, s3, 2"); A("s_add_u32 s14, s14, s61"); A("s_mul_i32 s14, s14, 7168")
    A("s_lshl_b32 s61, s11, 8"); A("s_add_u32 s14, s14, s61")
    A(f"s_mul_i32 s61, s64, {7*16*7168}"); A("s_sub_u32 s15, s14, s61"); A("s_add_u32 s14, s14, s61")
    A("s_lshl_b32 s18, s3, 10")
    A(f"s_mul_i32 s61, s64, {7*4096}"); A("s_add_u32 s16, s18, s61"); A("s_sub_u32 s17, s18, s61")
    def vdma_ops(n):
        odd = (n // 7) & 1
        return [f"s_add_u32 m0, s{16+odd}, {(n % 28)*4096}", f"s_add_u32 s62, s{14+odd}, {n*16*7168}",
                (f"buffer_load_dwordx4 v6, s[{SV}:{SV+3}], s62 offen lds", f"V{n//14}")]
    xb = [24, 25, 26, 27, 40, 41, 42, 43]
    A("s_lshl_b32 s19, s58, 5"); A("s_lshl_b32 s61, s3, 3"); A("s_add_u32 s19, s19, s61"); A("s_lshl_b32 s19, s19, 12")
    for i in range(8):
        gp, sub = gpos(i)
        A(f"s_add_u32 s61, s58, {gp}"); A("s_and_b32 s61, s61, 3"); A("s_lshl_b32 s61, s61, 13"); A("s_add_u32 s61, s61, s19"); A(f"s_add_u32 s{xb[i]}, s61, {sub*4096 + XR_OFF}")
    A("s_lshr_b32 s10, s57, 2"); A("s_add_u32 s10, s10, s3"); A("s_and_b32 s10, s10, 3")
    FP1 = P.get("FP1", 7)
    A("v_and_b32 v0, 3, v1"); A(f"v_lshlrev_b32 v0, {FP1}, v0")
    A("s_lshl_b32 s61, s64, 2"); A("s_add_u32 s61, s61, s3"); A(f"s_lshl_b32 s61, s61, {FP1+2}"); A(f"s_add_u32 s20, s61, {F1_OFF}")
    REP = P.get("REP", 1)
    A("s_lshl_b32 s61, s56, 12"); A("s_add_u32 s20, s20, s61")
    A("s_waitcnt lgkmcnt(0)"); A(f"s_add_u32 s60, s60, {TAGC}")
    def dq_ops(s):
        o = []
        if QC == 1 or s % 2 == 0:
            r = 144 + 4*gpos(s)[0]
            o += [f"v_lshlrev_b32 v8, 16, v{r}", f"v_and_b32 v9, 0xffff0000, v{r}", f"v_lshlrev_b32 v10, 16, v{r+1}", f"v_and_b32 v11, 0xffff0000, v{r+1}",
                  f"v_lshlrev_b32 v12, 16, v{r+2}", f"v_and_b32 v13, 0xffff0000, v{r+2}", f"v_lshlrev_b32 v14, 16, v{r+3}", f"v_and_b32 v15, 0xffff0000, v{r+3}"]
            o += [f"v_mul_f32 v{12+t}, -v{12+t}, v{8+t}" for t in range(4)]
        q = RQ + 32*(s%3); b = 16 + 16*s
        o += [f"v_cvt_f32_i32 v{q+e}, v{q+e}" for e in range(32)]
        o.append(".p2align 3")
        for i in range(8):
            for h2 in range(2):
                r = q + 4*i + 2*h2
                o.append(f"v_pk_fma_f32 v[{r}:{r+1}], v[{r}:{r+1}], v[{8+2*h2}:{9+2*h2}], v[{12+2*h2}:{13+2*h2}]")
        for t in range(4):
            for jj in range(4):
                o.append(f"v_cvt_pk_bf16_f32 v{b+4*t+jj}, v{q+8*jj+t}, v{q+8*jj+4+t}")
        return o
    def vread_ops(ks):
        base = (ks % 28)*4096; vr = 146 + base//65536; off = base % 65536
        return [f"ds_read_b64_tr_b16 a[{4*ks}:{4*ks+1}], v{vr} offset:{off}", f"ds_read_b64_tr_b16 a[{4*ks+2}:{4*ks+3}], v{vr} offset:{off+1024}"]
    pb = [4, 5, 7, 8]
    XA = 112
    DF = P.get("DF", 1); FP = P.get("FP", 2)
    def mid(c, VL, V1, V2, V2AT, V2P):
        nv = 0
        if VL:
            while nv < min(VL, 6): emit(vdma_ops(nv)); nv += 1
            A.wait_tag("q0"); emit(dq_ops(0)); A.stamp("dq0")
            A.wait_tag("q1")
            while nv < min(VL, 10): emit(vdma_ops(nv)); nv += 1
            emit(dq_ops(1)); A.stamp("dq1")
            while nv < VL: emit(vdma_ops(nv)); nv += 1
            qload(2); qload(3); qload(4); s0 = 2
        else:
            qload(2); s0 = 0
        for s in range(s0, 8):
            A.wait_tag(f"q{s}")
            dqo = dq_ops(s)
            if s == 7 and P.get("EP", -1) >= 0: dqo.insert(P["EP"], (f"buffer_load_dword v7, v0, {WS}, s20 offen sc1", "ep"))
            emit(dqo)
            if s + 3 < 8: qload(s+3)
            else:
                tgt = V1 if s == 7 else min(V1, VL + P.get("VS", 5)*(s-4))
                while nv < tgt: emit(vdma_ops(nv)); nv += 1
            A.stamp(f"dq{s}")
            if s == P.get("PTX", -1):
                A("s_mov_b32 s62, 0x90000"); A.vmem(f"buffer_load_dword a255, off, {WS}, s62 sc1", "pt")
                A("s_mov_b32 s62, 0x390000"); A.vmem(f"buffer_load_dword a255, off, {WS}, s62 sc1", "pt")
        for rp in range(4):
            A(f"s_add_u32 s62, s10, {rp}"); A("s_and_b32 s62, s62, 3"); A("s_lshl_b32 s62, s62, 10"); A(f"v_add_u32 v{8+rp}, s62, v2")
        for rp in range(1, 4):
            A(f"s_add_u32 s62, s3, {rp}"); A("s_and_b32 s62, s62, 3"); A("s_mul_i32 s62, s62, 12288"); A(f"s_add_u32 s62, s62, {0x1c000 + (rp-1)*4096}")
            A(f"v_add_u32 v{12+rp}, s62, v2")
        A("s_mul_i32 s62, s3, 12288"); A(f"s_add_u32 s62, s62, {0x1c000}"); A("v_add_u32 v12, s62, v2")
        A("v_lshlrev_b32 v144, 10, v4"); A("v_lshl_add_u32 v144, v3, 4, v144")
        A("s_lshl_b32 s61, s58, 1"); A("s_lshr_b32 s62, s10, 1"); A("s_add_u32 s61, s61, s62"); A("s_mul_i32 s61, s61, 224")
        A("s_lshl_b32 s62, s59, 2"); A("s_add_u32 s61, s61, s62"); A("s_lshl_b32 s61, s61, 10")
        A("s_and_b32 s62, s10, 1"); A("s_lshl_b32 s62, s62, 8"); A("s_add_u32 s61, s61, s62"); A(f"s_add_u32 s23, s61, {H_OFF}")
        A("s_lshl_b32 s19, s64, 2"); A("s_add_u32 s19, s19, s9"); A("s_lshl_b32 s19, s19, 12"); A(f"s_add_u32 s19, s19, {F2_OFF}")
        A("s_mul_i32 s61, s9, 14"); A("s_sub_u32 s61, s59, s61"); A("s_lshl_b32 s61, s61, 1"); A("s_and_b32 s62, s58, 1"); A("s_add_u32 s61, s61, s62")
        A(f"s_lshl_b32 s61, s61, {FP}"); A("s_add_u32 s21, s61, s19")
        A("v_lshrrev_b32 v146, 5, v1"); A("v_lshlrev_b32 v146, 11, v146"); A("v_bfe_u32 v147, v1, 2, 2"); A("v_lshl_add_u32 v146, v147, 8, v146")
        A("v_xor_b32 v147, s3, v147"); A("v_lshl_add_u32 v146, v147, 6, v146"); A("v_bfe_u32 v147, v1, 4, 1"); A("v_lshl_add_u32 v146, v147, 5, v146")
        A("v_and_b32 v147, 3, v1"); A("v_lshl_add_u32 v146, v147, 3, v146")
        A("v_add_u32 v147, 0x10000, v146")
        if DF:
            A("v_min_u32 v145, 27, v1"); A(f"v_lshlrev_b32 v145, {FP}, v145"); A(f"v_xor_b32 v148, {1<<FP}, v145"); A("v_cmp_eq_u32 vcc, s61, v145"); A("s_and_b32 s61, s56, 1"); A("s_lshl_b32 s61, s61, 15")
            A("v_cndmask_b32 v145, v145, v148, vcc"); A("s_add_u32 s19, s19, s61")
        A.stamp("dequant")
        poll(A, f"L_poll1{c}", "v0", "s20", pre=P.get("EP", -1) >= 0)
        A.stamp("flags1")
        order = [(rt, s) for rt in (1, 2, 3, 0) for s in range(8)]
        aq = [(f"buffer_load_dwordx4 a[{XA+16*s+4*rt}:{XA+16*s+4*rt+3}], v{8+rt}, {WS}, s{xb[s]} offen {P.get('XF','sc1')}", f"a{rt}_{s}") for rt, s in order]
        for i in range(P.get("NA0", 12)): emit([aq.pop(0)])
        A("v_mov_b32 v0, 0"); A("v_mov_b32 v7, s60")
        vr_next = 0; vfree = 0
        if V2 > 28:
            assert nv == 28
            A("s_barrier")
            for ks in range(28): emit(vread_ops(ks))
            vr_next = 28
        wq = []; delay = 0; nm = 0
        for idx, (rt, s) in enumerate(order):
            A.wait_tag(f"a{rt}_{s}")
            A.stamp(f"i{idx}")
            if vr_next and idx == 8:
                A("s_waitcnt lgkmcnt(0)"); A("s_barrier"); vfree = 28
            if (rt, s) == (0, P.get("B2AT", 4)):
                while wq: A(wq.pop(0))
                A("s_waitcnt lgkmcnt(0)"); A("s_barrier")
                A.stamp("b2")
                wq = [f"ds_read_b128 v[{160+4*i}:{163+4*i}], v12 offset:{i*1024}" for i in range(12)]
            for t in range(4):
                d = 208 + 4*t if rt == 0 else 160 + ((rt-1)*4+t)*4
                acc = f"v[{d}:{d+3}]"
                c_ = "0" if s == 0 else acc
                A(f"v_mfma_f32_16x16x32_bf16 {acc}, v[{16+16*s+4*t}:{19+16*s+4*t}], a[{XA+16*s+4*rt}:{XA+16*s+4*rt+3}], {c_}")
                nm += 1
                if wq and delay <= 0: A(wq.pop(0))
                delay -= 1
                if t in (1, 3) and aq: emit([aq.pop(0)])
                elif nv < V2 and idx >= V2AT and nm % V2P == 2: emit(vdma_ops(nv)); nv += 1
            if s == 7 and rt != 0:
                wq += [f"ds_write_b128 v{12+rt}, v[{160+((rt-1)*4+t)*4}:{163+((rt-1)*4+t)*4}] offset:{t*1024}" for t in range(4)]
                delay = 8
        while wq: A(wq.pop(0))
        A.stamp("g2mfma")
        A("s_waitcnt lgkmcnt(0)")
        A(".p2align 3")
        for o in (176, 192, 208):
            for e in range(0, 16, 2): A(f"v_pk_add_f32 v[{160+e}:{161+e}], v[{160+e}:{161+e}], v[{o+e}:{o+e+1}]")
        for r in range(4):
            for h2 in range(2):
                A(f"v_cvt_pk_bf16_f32 v{224+2*r+h2}, v{160+4*(2*h2)+r}, v{160+4*(2*h2+1)+r}")
        A.vmem(f"buffer_store_dwordx4 v[224:227], v144, {WS}, s23 offen sc1", "hst")
        A.vmem(f"buffer_store_dwordx4 v[228:231], v144, {WS}, s23 offen offset:512 sc1", "hst")
        landed = (min(nv, 28) // 14) * 14
        A.wait_tag("hst")
        A("s_barrier")
        A("s_cmp_lg_u32 s3, 0"); A(f"s_cbranch_scc1 L_f2done{c}")
        A("v_lshlrev_b32 v8, 15, v1"); A("s_mov_b64 exec, 3"); A(f"buffer_store_dword v7, v8, {WS}, s21 offen sc1"); A("s_mov_b64 exec, -1")
        A(f"L_f2done{c}:")
        A.stamp("g2pub")
        if DF:
            assert vr_next == 0 and landed == 14 and V3 == 28
            if P.get("PRE2", 1):
                A("s_cmp_lg_u32 s3, 3"); A("s_cbranch_scc1 L_nopre2"); A(f"buffer_load_dword v14, v145, {WS}, s19 offen sc1"); A("L_nopre2:")
            npost = 28 - nv
            while nv < 28: emit(vdma_ops(nv)); nv += 1
            for ks in range(14): emit(vread_ops(ks))
            return npost
        while nv < min(V3, 28 + vfree): emit(vdma_ops(nv)); nv += 1
        for ks in range(vr_next, landed): emit(vread_ops(ks))
        vr_next = max(vr_next, landed)
        while vr_next < 28 or (vfree < 28 and nv < V3):
            if vr_next == vfree:
                A.wait_tag(f"V{vr_next//14}"); A("s_barrier")
                for ks in range(vr_next, vr_next + 14): emit(vread_ops(ks))
                vr_next += 14
            if nv < V3:
                A("s_waitcnt lgkmcnt(0)"); A("s_barrier"); vfree = vr_next
                while nv < min(V3, 28 + vfree): emit(vdma_ops(nv)); nv += 1
            else: vfree = vr_next
        assert nv == V3 and vr_next == 28
    vm0 = list(A.vm); st0 = list(A.stnames)
    if P.get("CL"): A("s_bitcmp1_b32 s57, 1"); A("s_cbranch_scc1 L_late")
    npost = mid("E", *P.get("CE", [0, 14, 21, 16, 4]))
    vmE = list(A.vm)
    if P.get("CL"):
        A("s_branch L_fjoin")
        A("L_late:")
        A.vm = list(vm0); A.stnames = list(st0)
        mid("L", *P["CL"])
        A("L_fjoin:")
    lo, sh = (vmE, A.vm) if len(vmE) >= len(A.vm) else (A.vm, vmE)
    assert lo[len(lo)-len(sh):] == sh
    A.vm = list(lo); nv = V3; vr_next = vis = 14 if DF else 28; vfree1 = not DF
    A("s_add_u32 s10, s9, s11"); A("s_and_b32 s10, s10, 3")
    for p in range(4):
        A(f"s_add_u32 s61, s10, {p+1}"); A("s_and_b32 s61, s61, 3"); A("s_lshl_b32 s62, s64, 2"); A("s_add_u32 s61, s61, s62")
        A("s_mul_i32 s61, s61, 224"); A("s_mul_i32 s62, s9, 56"); A("s_add_u32 s61, s61, s62"); A("s_add_u32 s61, s61, s3")
        A(f"s_lshl_b32 s61, s61, 10"); A(f"s_add_u32 s{pb[p]}, s61, {H_OFF}")
    A("v_add_u32 v13, 0x10000, v2"); A("v_add_u32 v15, 0x20000, v2")
    A("s_lshl_b32 s20, s65, 18"); A("s_lshl_b32 s61, s9, 16"); A("s_add_u32 s20, s20, s61"); A("s_lshl_b32 s61, s3, 12"); A("s_add_u32 s20, s20, s61")
    A(f"s_add_u32 s20, s20, {PART_OFF}")
    A("v_min_u32 v12, 27, v1"); A(f"v_lshlrev_b32 v12, {FP}, v12")
    A("v_and_b32 v9, 31, v1"); A("v_mul_u32_u24 v9, 7168, v9"); A("v_lshrrev_b32 v10, 5, v1"); A("v_lshl_add_u32 v9, v10, 4, v9")
    A("s_lshl_b32 s61, s64, 2"); A("s_add_u32 s61, s61, s10"); A(f"s_mul_i32 s61, s61, {32*7168}")
    A("s_lshl_b32 s62, s11, 8"); A("s_add_u32 s61, s61, s62"); A("s_lshl_b32 s62, s3, 6"); A("s_add_u32 s23, s61, s62")
    A("v_and_b32 v8, 3, v1"); A("v_mul_u32_u24 v8, 0x14000, v8"); A("s_lshl_b32 s21, s65, 18"); A(f"s_add_u32 s21, s21, {PART_OFF}")
    for k in range(3):
        if P.get("SELF"):
            A(f"s_add_u32 s61, s9, {k+1}"); A("s_and_b32 s61, s61, 3"); A("s_lshl_b32 s61, s61, 16"); A(f"s_add_u32 s{24+k}, s61, s12"); A(f"s_xor_b32 s{24+k}, s{24+k}, 0x40000")
        else:
            A(f"s_add_u32 s61, s9, {3-k}"); A("s_and_b32 s61, s61, 3"); A("s_lshl_b32 s61, s61, 14"); A(f"s_add_u32 s{24+k}, s61, s20")
    A("s_waitcnt lgkmcnt(0)")
    A.stamp("vb1")
    if not DF: A("s_and_b32 s61, s56, 1"); A("s_lshl_b32 s61, s61, 15"); A("s_add_u32 s19, s19, s61")
    if P.get("ONEP", 1):
        A("s_cmp_lg_u32 s3, 3"); A("s_cbranch_scc1 L_poll2_x")
        keep = list(A.vm)
        if DF and P.get("PRE2", 1):
            A(f"s_waitcnt vmcnt({npost})"); A("v_cmp_ne_u32 vcc, s60, v14"); A("s_cbranch_vccz L_poll2_x")
        poll(A, "L_poll2", "v145" if DF else "v12", "s19", "v14", slp=P.get("SLP", 0))
        A.vm = keep
        A("s_barrier")
    else: poll(A, "L_poll2", "v12", "s19", "v14", slp=P.get("SLP", 0))
    A.stamp("flags2")
    A("v_mul_u32_u24 v12, 37, v1"); A("v_add_u32 v12, s60, v12"); A("v_and_b32 v12, 0xff, v12"); A("s_mov_b32 s27, 0xffffff00")
    groups = []
    for kb in range(X//4):
        for p in range(3): groups.append((p, 4*kb))
    for p in range(3):
        for kb in range(X//4, 14): groups.append((p, 4*kb))
    for kb in range(14): groups.append((3, 4*kb))
    frags = [(p, k0+i) for (p, k0) in groups for i in range(4)]
    NG = len(groups); NFR = len(frags)
    SGG = P.get("SGG", 2); AH = P.get("AH", 8); AH0 = P.get("AH0", 6); AH2 = P.get("AH2", 16); LA = P.get("LA", 4)
    free = list(range(28, 40)); slot = {}
    def hdma_ops(g):
        p, k0 = groups[g]; slot[g] = free.pop(0)
        return [f"s_add_u32 m0, s18, {slot[g]*4096}", f"s_add_u32 s62, s{pb[p]}, {k0*1024}",
                (f"buffer_load_dwordx4 v2, {WS}, s62 offen {P.get('HF','sc1')} lds", f"h{g}")]
    lg = []
    def ds(s_, tag): A(s_); lg.append(tag)
    def lwait(tag):
        idx = [i for i, t in enumerate(lg) if t == tag]
        if idx:
            n = min(len(lg) - 1 - idx[-1], 15)
            A(f"s_waitcnt lgkmcnt({n})"); del lg[:len(lg)-n]
    hnext = 0
    for g in range(AH0): emit(hdma_ops(g)); hnext += 1
    for _ in range(P.get("VP", 0)): emit(vdma_ops(nv)); nv += 1
    side = []; ready = -1; released = -1
    vrel = set()
    last_of_pass = {}
    for i, (p, ks) in enumerate(frags): last_of_pass[p] = i
    needf = {b: min(i for i, (p_, k_) in enumerate(frags) if k_ >= 14*b) for b in (1, 2, 3)}
    nread = 0
    VRATE = P.get("VRATE", 2)
    S0 = P.get("S0", 2); CF = P.get("CF", 64); PE = P.get("PE", 100); PW = P.get("PW", 12)
    PLS = P.get("PLS", [140, 184, 204])
    srcb = [24, 25, 26]; vq_ = []; PSTF = P.get("PSTF", "sc1")
    def pload(k):
        return [[(f"buffer_load_dwordx4 v[{192+16*k+4*qd}:{195+16*k+4*qd}], v2, {WS}, s{srcb[k]} offen offset:{qd*1024} sc1", f"pl{k}")] for qd in range(4)]
    for f, (p, ks) in enumerate(frags):
        while nread < min(NFR, f + 1 + LA):
            g = nread // 4
            if g > ready:
                tgt = min(NG - 1, g + SGG - 1)
                while hnext <= tgt: emit(hdma_ops(hnext)); hnext += 1
                A.wait_tag(f"h{tgt}")
                for b in (1, 2, 3):
                    if nv >= 14*(b+1) and f >= needf[b] - P.get("WM", 14): A.wait_tag(f"V{b}")
                A("s_barrier")
                ready = tgt
                while released < f // 4 - 1:
                    released += 1; free.append(slot[released])
                for b in (1, 2, 3):
                    if nv >= 14*(b+1) and f"V{b}" not in A.vm: vis = max(vis, 14*(b+1))
                    if b not in vrel and vr_next >= 14*(b+1) and not any(t == f"W{k}" for t in lg for k in range(14*b, 14*b+14)):
                        vrel.add(b)
                        if b == 1: vfree1 = True
                        else: free.extend(range(14*(b-2), 14*(b-2)+14))
            r = 96 + 4*(nread % 8); base = slot[g]*4096 + (nread % 4)*1024
            ds(f"ds_read_b128 v[{r}:{r+3}], v{[2,13,15][base//65536]} offset:{base % 65536}", f"A{nread}")
            nread += 1
        while vr_next <= ks:
            assert vr_next < vis, (f, ks, vr_next, vis)
            for o in vread_ops(vr_next): ds(o, f"W{vr_next}")
            vr_next += 1
        lwait(f"W{ks}")
        lwait(f"A{f}")
        d = 16 + 16*p; r = 96 + 4*(f % 8)
        c = "0" if ks == 0 else f"v[{d}:{d+15}]"
        A(f"v_mfma_f32_32x32x16_bf16 v[{d}:{d+15}], a[{4*ks}:{4*ks+3}], v[{r}:{r+3}], {c}")
        if A.stamp(f"f{f}"): lg.clear()
        did = False
        ah = AH2 if nv == 56 else AH
        if P.get("HR"): ah = AH2 if (f % P["HR"] == 1 and f >= P.get("HR0", 0)) else P.get("AHL", AH)
        hok = hnext < NG and hnext <= ready + ah and free
        VW = [[P["VS3"][0]+P["VS3"][1]*i_, 1] for i_ in range(56-V3)] if P.get("VS3") else P.get("VW")
        if VW and nv < 56 and any(a_ <= f < a_ + n_ for a_, n_ in VW):
            assert nv < 42 or vfree1, f
            emit(vdma_ops(nv)); nv += 1; did = True
        if not did and side and (f % 2 == 0 or not hok or P.get("FS", 1)):
            emit(side.pop(0)); did = True
        if not did and hok:
            emit(hdma_ops(hnext)); hnext += 1; did = True
        if not did and not VW and nv < 56 and f % VRATE == 0:
            emit(vdma_ops(nv)); nv += 1; did = True
        FS = P.get("FS", 1); o1, o2, o3 = (2, 3, 1) if FS else (4, 7, 2)
        for _ in range(4 if FS else 2):
            if vq_: A(vq_.pop(0))
        if vr_next < vis:
            for o in vread_ops(vr_next): ds(o, f"W{vr_next}")
            vr_next += 1
        for pp in range(3):
            dd = 16 + 16*pp
            if f == last_of_pass[pp] + o1:
                vq_ += [f"v_and_or_b32 v{dd+e}, v{dd+e}, s27, v12" for e in range(16)]
            if f == last_of_pass[pp] + o2:
                side.append([f"s_add_u32 s61, s9, {pp+1}", "s_and_b32 s61, s61, 3", "s_lshl_b32 s61, s61, 16", "s_add_u32 s22, s61, s12",
                             (f"buffer_store_dwordx4 v[{dd}:{dd+3}], v2, {WS}, s22 offen {PSTF}", f"pst{pp}")])
            for qd in range(1, 4):
                if f == last_of_pass[pp] + o2 + o3*qd:
                    side.append([(f"buffer_store_dwordx4 v[{dd+4*qd}:{dd+4*qd+3}], v2, {WS}, s22 offen offset:{qd*1024} {PSTF}", f"pst{pp}")])
        for k in range(3):
            if f == PLS[k]: side.extend(pload(k))
        if f == P.get("PTP", -1): side.append([(f"buffer_load_dword a255, v8, {WS}, s21 offen sc1", "pt")])
        if f == P.get("PTO", -1): side.append(["s_mov_b64 exec, 0x1010101", (f"buffer_load_dword a255, v9, s[{SO}:{SO+3}], s23 offen", "pt"), "s_mov_b64 exec, -1"])
    while side: emit(side.pop(0))
    assert nv == 56 and vr_next == 56 and hnext == NG
    A.stamp("g3mfma")
    for k in range(3):
        A(f"s_mov_b32 s63, {2000 if P.get('SELF') else 100000}")
        b = 192 + 16*k
        A.wait_tag(f"pl{k}")
        A(f"L_chk{k}:")
        for e in range(16): A(f"v_xor_b32 v{176+e}, v{b+e}, v12")
        A("v_or3_b32 v10, v176, v177, v178"); A("v_or3_b32 v11, v179, v180, v181")
        for e in range(182, 190, 4):
            A(f"v_or3_b32 v10, v10, v{e}, v{e+1}"); A(f"v_or3_b32 v11, v11, v{e+2}, v{e+3}")
        A("v_or3_b32 v10, v10, v190, v191"); A("v_or_b32 v10, v10, v11"); A("v_and_b32 v10, 0xff, v10")
        A("v_cmp_ne_u32 vcc, 0, v10")
        A(f"s_cbranch_vccz L_chk{k}_x")
        A("s_sub_u32 s63, s63, 1"); A(f"s_cbranch_scc1 L_chk{k}_x")
        for qd in range(4): A(f"buffer_load_dwordx4 v[{b+4*qd}:{b+4*qd+3}], v2, {WS}, s{24+k} offen offset:{qd*1024} sc1")
        A("s_waitcnt vmcnt(0)")
        A(f"s_branch L_chk{k}")
        A(f"L_chk{k}_x:")
        A.stamp(f"pl{k}")
        A(".p2align 3")
        for e in range(0, 16, 2): A(f"v_pk_add_f32 v[{64+e}:{65+e}], v[{64+e}:{65+e}], v[{176+e}:{177+e}]")
    for e in range(8): A(f"v_cvt_pk_bf16_f32 v{96+e}, v{64+2*e}, v{65+2*e}")
    A("s_nop 1")
    A("v_permlane32_swap_b32 v96, v98"); A("v_permlane32_swap_b32 v97, v99")
    A("v_permlane32_swap_b32 v100, v102"); A("v_permlane32_swap_b32 v101, v103")
    A(f"buffer_store_dwordx4 v[96:99], v9, s[{SO}:{SO+3}], s23 offen {P.get('OST','')}")
    A(f"buffer_store_dwordx4 v[100:103], v9, s[{SO}:{SO+3}], s23 offen offset:32 {P.get('OST','')}")
    A("s_lshr_b32 s61, s57, 1"); A("s_or_b32 s61, s61, s56"); A("s_or_b32 s61, s61, s3"); A("s_cmp_lg_u32 s61, 0"); A("s_cbranch_scc1 L_noep")
    A("s_lshl_b32 s61, s64, 7"); A(f"s_add_u32 s61, s61, {EP_OFF}")
    emit(flag_ops("s61", "v0", "v7", "x"))
    A("L_noep:")
    if diag: A("s_waitcnt vmcnt(0)")
    A.stamp("end")
    A("s_branch L_fin")
    A("L_g1:")
    A.vm = []
    A("s_and_b32 s64, s56, 1")
    A("s_lshr_b32 s59, s56, 1"); A("s_lshl_b32 s59, s59, 2"); A("s_add_u32 s59, s59, s57"); A("s_sub_u32 s59, s59, 28")
    A("v_lshrrev_b32 v11, 3, v1"); A("v_and_b32 v12, 7, v1"); A("v_and_b32 v13, 2, v11"); A("v_xor_b32 v13, v12, v13")
    A("v_lshlrev_b32 v14, 11, v11"); A("v_lshl_add_u32 v9, v13, 4, v14"); A("v_xor_b32 v10, 64, v9")
    A("v_lshrrev_b32 v13, 1, v11"); A("v_xor_b32 v13, v12, v13"); A("v_lshl_add_u32 v8, v13, 4, v14"); A("v_xor_b32 v11, 64, v8")
    A("s_lshl_b32 s58, s3, 15"); A("s_lshl_b32 s62, s59, 7"); A("s_add_u32 s58, s58, s62")
    A("s_lshl_b32 s65, s64, 2"); A("s_add_u32 s65, s65, s3"); A("s_lshl_b32 s65, s65, 16")
    A("s_waitcnt lgkmcnt(0)")
    if diag:
        for i in range(1, 18): A(f"s_mov_b64 s[{66+2*i}:{67+2*i}], s[66:67]")
    srd(A, SX, 4, 256*1024*2); srd(A, SU, 12, 1024*1024*2)
    A("s_lshl_b32 s4, s3, 11"); A("s_lshl_b32 s5, s3, 12"); A("s_add_u32 s5, s5, 8192")
    NS = 6; STG = 24576; G1D = P.get("G1D", 3)
    def g1_ops(st):
        o = []
        for i in range(2):
            o.append([f"s_add_u32 m0, s4, {(st % NS)*STG + i*1024}", f"s_add_u32 s62, s58, {st*64*2048 + i*8*2048}",
                      (f"buffer_load_dwordx4 v{9+i}, s[{SU}:{SU+3}], s62 offen lds", f"g{st}")])
        for i in range(4):
            o.append([f"s_add_u32 m0, s5, {(st % NS)*STG + i*1024}", f"s_add_u32 s62, s65, {st*128 + i*8*2048}",
                      (f"buffer_load_dwordx4 v{[8,11][i&1]}, s[{SX}:{SX+3}], s62 offen lds", f"g{st}")])
        return o
    for st in range(G1D):
        for o in g1_ops(st): emit(o)
    A("s_lshl_b32 s61, s64, 7"); A(f"s_add_u32 s61, s61, {EP_OFF}"); A("s_add_u32 s22, s20, s61"); A("s_addc_u32 s23, s21, 0")
    A("s_load_dword s60, s[22:23], 0")
    srd(A, SV, 14, 3584*3584*2); srd(A, SW, 20, 0x10000000)
    A("v_lshrrev_b32 v50, 2, v3"); A("v_and_b32 v51, 3, v3"); A("v_lshlrev_b32 v52, 10, v4")
    A("v_lshl_add_u32 v52, v50, 7, v52"); A("v_lshl_add_u32 v52, v51, 3, v52")
    A("v_lshrrev_b32 v53, 1, v50"); A("v_and_b32 v51, 1, v4"); A("v_lshl_add_u32 v53, v51, 1, v53"); A("v_lshlrev_b32 v53, 5, v53")
    for t in range(4):
        A(f"v_xor_b32 v{16+3*t}, {32*t}, v53"); A(f"v_add_u32 v{16+3*t}, v{16+3*t}, v52")
        A(f"v_add_u32 v{17+3*t}, {2*STG}, v{16+3*t}"); A(f"v_add_u32 v{18+3*t}, {4*STG}, v{16+3*t}")
    A("v_lshrrev_b32 v50, 1, v3"); A("v_xor_b32 v50, v50, v4"); A("v_lshlrev_b32 v50, 4, v50"); A("v_lshl_add_u32 v50, v3, 7, v50")
    A("v_add_u32 v28, s5, v50"); A("v_xor_b32 v50, 64, v50"); A("v_add_u32 v31, s5, v50")
    for par in range(2):
        A(f"v_add_u32 v{29+3*par}, {2*STG}, v{28+3*par}"); A(f"v_add_u32 v{30+3*par}, {4*STG}, v{28+3*par}")
    A("s_waitcnt lgkmcnt(0)"); A(f"s_add_u32 s60, s60, {TAGC}")
    def g1reads(s):
        st = s // 2; win = (st % NS)//2; o0 = ((st % NS) % 2)*STG; b = 112 + 16*(s&1); xa = 96 + 8*(s&1)
        o = [f"ds_read_b128 v[{xa+4*rt}:{xa+4*rt+3}], v{28+3*(s&1)+win} offset:{o0 + rt*2048}" for rt in range(2)]
        for t in range(4):
            o.append(f"ds_read_b64_tr_b16 v[{b+4*t}:{b+4*t+1}], v{16+3*t+win} offset:{o0 + (s&1)*4096}")
            o.append(f"ds_read_b64_tr_b16 v[{b+4*t+2}:{b+4*t+3}], v{16+3*t+win} offset:{o0 + (s&1)*4096 + 512}")
        return o
    A.wait_tag("g0"); A("s_barrier")
    A.stamp("g1s0")
    for o in g1reads(0): A(o)
    dq_ = []
    for s in range(32):
        if s % 2 == 0 and s//2 + G1D < 16: dq_ += g1_ops(s//2 + G1D)
        rd = []
        if s + 1 < 32:
            if (s + 1) % 2 == 0:
                A.wait_tag(f"g{(s+1)//2}"); A("s_barrier")
            rd = g1reads(s + 1)
        A("s_waitcnt lgkmcnt(0)")
        b = 112 + 16*(s&1); xa = 96 + 8*(s&1)
        for t in range(4):
            for rt in range(2):
                d = 64 + (rt*4+t)*4
                c = "0" if s == 0 else f"v[{d}:{d+3}]"
                A(f"v_mfma_f32_16x16x32_bf16 v[{d}:{d+3}], v[{b+4*t}:{b+4*t+3}], v[{xa+4*rt}:{xa+4*rt+3}], {c}")
                k = t*2 + rt
                if k < 5:
                    for _ in range(2):
                        if rd: A(rd.pop(0))
                elif dq_: emit(dq_.pop(0))
        A.stamp(f"g1s{s+1}")
    A.stamp("g1mfma")
    A("s_lshl_b32 s61, s64, 1"); A("s_lshr_b32 s62, s3, 1"); A("s_add_u32 s61, s61, s62"); A("s_lshl_b32 s61, s61, 5")
    A("s_lshl_b32 s62, s59, 1"); A("s_add_u32 s61, s61, s62"); A("s_lshl_b32 s61, s61, 2"); A("s_and_b32 s62, s3, 1"); A("s_lshl_b32 s62, s62, 1")
    A("s_add_u32 s61, s61, s62"); A("s_lshl_b32 s61, s61, 10"); A("s_add_u32 s62, s61, 4096")
    for e in range(16): A(f"v_cvt_pk_bf16_f32 v{96+e}, v{64+2*e}, v{65+2*e}")
    for rt in range(2):
        for sp in range(2):
            r = 96 + rt*8 + sp*4
            A.vmem(f"buffer_store_dwordx4 v[{r}:{r+3}], v2, {WS}, s{61+sp} offen offset:{rt*1024} sc1", "xst")
    A("s_lshl_b32 s61, s64, 4"); A("s_add_u32 s61, s61, s59"); A(f"s_lshl_b32 s61, s61, {FP1}"); A(f"s_add_u32 s61, s61, {F1_OFF}")
    A("v_mov_b32 v8, 0"); A("v_mov_b32 v7, s60")
    A.wait_all(); A("s_barrier")
    A("s_cmp_lg_u32 s3, 0"); A("s_cbranch_scc1 L_f1done")
    if REP:
        A("v_lshlrev_b32 v8, 12, v1"); A("s_mov_b64 exec, 0xff"); A(f"buffer_store_dword v7, v8, {WS}, s61 offen sc1"); A("s_mov_b64 exec, -1")
    else: emit(flag_ops("s61", "v8", "v7", "x"))
    A("L_f1done:")
    A.stamp("g1pub")
    R0 = P.get("SPR0", 448); NR = P.get("SPN", 14)
    if NR:
        A("v_cmp_lt_u32 vcc, 27, v1"); A("s_nop 1"); A("v_cndmask_b32 v8, 0, 1, vcc"); A("v_mul_u32_u24 v9, 28, v8"); A("v_sub_u32 v9, v1, v9")
        A("v_lshlrev_b32 v9, 7, v9"); A("v_mul_u32_u24 v8, 7168, v8"); A("v_add_u32 v8, v8, v9")
        A("s_sub_u32 s61, s57, 28"); A("s_lshl_b32 s61, s61, 2"); A("s_add_u32 s61, s61, s3"); A("s_lshl_b32 s61, s61, 1")
        A("s_lshr_b32 s62, s56, 1"); A("s_mul_i32 s62, s62, 896"); A("s_add_u32 s61, s61, s62"); A(f"s_add_u32 s61, s61, {R0}"); A("s_mul_i32 s61, s61, 7168")
        A("s_mul_i32 s62, s64, 3584"); A("s_add_u32 s61, s61, s62")
        A("s_mov_b32 exec_hi, 0xffffff")
        for i in range(NR):
            A(f"buffer_load_dword v{10+(i&1)}, v8, s[{SV}:{SV+3}], s61 offen")
            A(f"s_add_u32 s61, s61, {32*7168}")
            A("s_waitcnt vmcnt(1)")
        A("s_mov_b64 exec, -1")
    A("L_fin:")
    if diag:
        A("s_lshl_b32 s61, s2, 2"); A("s_add_u32 s61, s61, s3"); A("s_lshl_b32 s61, s61, 7"); A(f"s_add_u32 s61, s61, {STAMP_OFF}")
        A("v_mov_b32 v8, 0")
        for i in range(len(A.stnames)):
            A(f"v_mov_b32 v7, s{66+2*i}"); A(f"buffer_store_dword v7, v8, {WS}, s61 offen offset:{4*i}")
    A("L_end:"); A("s_endpgm"); A("L_codeend:")
    A('.section .rodata,"a"'); A(".p2align 6"); A(f".amdhsa_kernel {NAME}")
    A("  .amdhsa_next_free_vgpr 512"); A("  .amdhsa_next_free_sgpr 102"); A("  .amdhsa_accum_offset 256")
    A("  .amdhsa_group_segment_fixed_size 0"); A("  .amdhsa_kernarg_size 72"); A("  .amdhsa_user_sgpr_count 2")
    A("  .amdhsa_user_sgpr_kernarg_segment_ptr 1"); A("  .amdhsa_system_sgpr_workgroup_id_x 1"); A(".end_amdhsa_kernel")
    return A
if __name__ == "__main__":
    import json
    out = sys.argv[1]; diag = len(sys.argv) > 2 and sys.argv[2] == "diag"
    P = json.loads(sys.argv[3]) if len(sys.argv) > 3 else {}
    A = gen(diag, P); open(out, "w").write(A.text())
    if diag: print(A.stnames)
```

```python
import sys
NAME = "standalone__weight_only_int_quip__sampling_kernel"
XR_OFF   = 0x000000
H_OFF    = 0x100000
EP_OFF   = 0x300000
F1_OFF   = 0x310000
F2_OFF   = 0x320000
F3_OFF   = 0x380000
PART_OFF = 0x1000000
STAMP_OFF = 0x800000
TAGC = 0x9E3779B9
def is_main(wg): return True
def is_H(wg): return ((wg >> 4) & 1) == 0
def is_main(wg): return (wg >> 3) < 28

class Asm:
    def __init__(self, diag=False):
        self.L = []; self.vm = []; self.diag = diag; self.stnames = ["start"]; self.clk = "s_memrealtime"; self.only = None
    def __call__(self, s): self.L.append(s)
    def text(self): return "\n".join(self.L) + "\n"
    def vmem(self, s, tag):
        if len(self.vm) >= 63: self.wait_n(62)
        self.L.append(s); self.vm.append(tag)
    def wait_n(self, n):
        if len(self.vm) > n:
            self.L.append(f"s_waitcnt vmcnt({n})"); self.vm = self.vm[len(self.vm)-n:] if n else []
    def wait_tag(self, tag):
        idx = [i for i, t in enumerate(self.vm) if t == tag]
        if idx: self.wait_n(len(self.vm) - 1 - idx[-1])
    def wait_all(self): self.wait_n(0)
    def stamp(self, name):
        if not self.diag or name not in self.only: return False
        r = 66 + 2*len(self.stnames); assert r + 1 < 102
        self.L.append(f"{self.clk} s[{r}:{r+1}]"); self.L.append("s_waitcnt lgkmcnt(0)")
        self.stnames.append(name); return True
    def emit(self, ops):
        for o in ops:
            if isinstance(o, tuple): self.vmem(o[0], o[1])
            else: self(o)

def srd(A, d, b, nbytes):
    A(f"s_mov_b32 s{d}, s{b}"); A(f"s_mov_b32 s{d+1}, s{b+1}"); A(f"s_mov_b32 s{d+2}, {nbytes}"); A(f"s_mov_b32 s{d+3}, 0x20000")

SX, SQ, SS, SZ, SU, SV, SO, SW = 24, 28, 32, 36, 40, 44, 48, 52
WS = f"s[{SW}:{SW+3}]"
def poll(A, label, voff, soff, vt="v7", slp=0, pre=False):
    A("s_mov_b32 s63, 100000")
    if pre: A(f"s_branch {label}_w")
    A(f"{label}:")
    A(f"buffer_load_dword {vt}, {voff}, {WS}, {soff} offen sc1")
    A(f"{label}_w:")
    A("s_sub_u32 s63, s63, 1")
    A(f"s_cbranch_scc1 {label}_x")
    A("s_waitcnt vmcnt(0)")
    A(f"v_cmp_ne_u32 vcc, s60, {vt}")
    if slp:
        A(f"s_cbranch_vccz {label}_x"); A(f"s_sleep {slp}"); A(f"s_branch {label}")
    else: A(f"s_cbranch_vccnz {label}")
    A(f"{label}_x:")
    A.vm = []
def flag_ops(soff, vz, vt, tag):
    return ["s_mov_b64 exec, 1", (f"buffer_store_dword {vt}, {vz}, {WS}, {soff} offen sc1", tag), "s_mov_b64 exec, -1"]

def gen(diag=False, P=None):
    P = dict(P or {})
    return gen_(diag, P)
def gen_(diag=False, P=None):
    P = P or {}
    A = Asm(diag); emit = A.emit
    if P.get("CYC"): A.clk = "s_memtime"
    A.only = P.get("ONLY", ["dequant","flags1","g2mfma","g2pub","vb1","flags2","f0","f40","f83","f167","g3mfma","pl2","end"])
    X = P.get("X", 0)
    V1 = P.get("V1", 14)
    V2 = P.get("V2", 21)
    V3 = P.get("V3", 56)
    A("; @launch grid=(256,1,1) block=(256,1,1) lds=163840")
    A('.amdgcn_target "amdgcn-amd-amdhsa--gfx950"'); A(".text")
    A(f".globl {NAME}"); A(".p2align 8"); A(f".type {NAME},@function"); A(f"{NAME}:")
    A("s_cmp_ge_u32 s2, 256"); A("s_cbranch_scc1 L_end")
    if diag:
        A(f"{A.clk} s[66:67]")
    A("s_load_dwordx16 s[4:19], s[0:1], 0")
    A("s_load_dwordx2 s[20:21], s[0:1], 64")
    if (0 if P.get("TM") else P.get("IPF", 3)) == 2:
        A("s_getpc_b64 s[22:23]"); A("L_pc:")
        A("s_and_b32 s57, s2, 0xf8"); A("v_lshrrev_b32 v1, 5, v0"); A("v_add_lshl_u32 v1, v1, s57, 7"); A("v_min_u32 v1, L_codeend-L_pc-4, v1")
        A("global_load_dword a255, v1, s[22:23]")
    A("v_lshrrev_b32 v1, 6, v0"); A("s_and_b32 s56, s2, 7"); A("v_readfirstlane_b32 s3, v1")
    A("v_and_b32 v1, 63, v0"); A("s_lshr_b32 s57, s2, 3")
    A("v_lshlrev_b32 v2, 4, v1"); A("v_and_b32 v3, 15, v1"); A("v_lshrrev_b32 v4, 4, v1")
    A("s_cmp_ge_u32 s57, 28"); A("s_cbranch_scc1 L_g1")
    if P.get("IPF") == 8:
        A("s_cmp_lg_u32 s3, 3"); A("s_cbranch_scc1 L_noipf")
        A(f"s_sub_u32 s61, s57, {P.get('IPJ', 26)}"); A("s_cmp_ge_u32 s61, 2"); A("s_cbranch_scc1 L_noipf")
        A("s_getpc_b64 s[96:97]"); A("L_pc:")
        A("s_lshl_b32 s61, s61, 13"); A("v_lshlrev_b32 v14, 7, v1"); A("v_add_u32 v14, s61, v14"); A("v_add_u32 v15, 0x4000, v14"); A("v_min_u32 v15, L_codeend-L_pc-4, v15")
        A("global_load_dword a255, v15, s[96:97]"); A("global_load_dword a255, v14, s[96:97]")
        A("L_noipf:")
    if P.get("IPF") == 6:
        A("s_getpc_b64 s[96:97]"); A("L_pc:")
        A("s_mul_i32 s61, s3, 28"); A("s_add_u32 s61, s61, s57"); A("s_lshl_b32 s61, s61, 8"); A("s_min_u32 s61, s61, L_codeend-L_pc-132")
        A("s_add_u32 s96, s96, s61"); A("s_addc_u32 s97, s97, 0")
        A("s_load_dword s98, s[96:97], 0"); A("s_load_dword s99, s[96:97], 128")
    if (0 if P.get("TM") else P.get("IPF", 3)) == 3:
        A("s_cmp_lg_u32 s3, 3"); A("s_cbranch_scc1 L_noipf")
        A(f"s_sub_u32 s61, s57, {P.get('IPJ', 6)}"); A(f"s_cmp_ge_u32 s61, {P.get('IPN', 4)}"); A("s_cbranch_scc1 L_noipf")
        A("s_getpc_b64 s[22:23]"); A("L_pc:")
        A("s_lshl_b32 s61, s61, 13"); A("v_lshlrev_b32 v14, 7, v1"); A("v_add_u32 v14, s61, v14"); A("v_min_u32 v14, L_codeend-L_pc-4, v14")
        A("global_load_dword a255, v14, s[22:23]")
        A("L_noipf:")
    A("s_and_b32 s64, s57, 1")
    A("s_lshl_b32 s58, s64, 1"); A("s_bfe_u32 s62, s57, 0x10001"); A("s_add_u32 s58, s58, s62")
    A("s_lshr_b32 s59, s57, 2"); A("s_mul_i32 s61, s56, 7"); A("s_add_u32 s59, s59, s61")
    A("v_lshrrev_b32 v8, 2, v1"); A("v_lshlrev_b32 v8, 11, v8"); A("v_and_b32 v9, 3, v1"); A("v_lshl_add_u32 v8, v9, 7, v8")
    A("v_lshlrev_b32 v9, 11, v1")
    A("v_mul_u32_u24 v5, 57344, v4"); A("v_lshl_add_u32 v5, v3, 4, v5")
    T0 = P.get("T0", 1)
    if P.get("TM"):
        A("s_lshr_b32 s61, s57, 2"); A("s_add_u32 s62, s56, 1"); A("s_and_b32 s62, s62, 3"); A("s_sub_u32 s62, s61, s62")
        A("s_cmp_gt_i32 s62, 0"); A("s_subb_u32 s61, s61, 0"); A("s_cmp_gt_i32 s62, 4"); A("s_subb_u32 s61, s61, 0")
        A("s_lshl_b32 s61, s61, 2"); A("s_and_b32 s63, s57, 3"); A("s_add_u32 s61, s61, s63")
        A("s_lshl_b32 s60, s3, 3"); A("s_add_u32 s63, s63, s60"); A("s_cmp_gt_i32 s62, 0"); A("s_cselect_b32 s60, 0, 4"); A("s_add_u32 s60, s60, 78"); A("s_add_u32 s60, s60, s63")
        A("s_and_b32 s62, s62, 3"); A("s_cselect_b32 s61, s61, 20")
        A("s_mul_i32 s62, s3, 20"); A("s_add_u32 s62, s62, s61"); A("s_cmp_lt_u32 s61, 20"); A("s_cselect_b32 s61, s62, s60"); A("s_cselect_b32 s62, s62, 0")
        A("s_sub_u32 s62, s62, 78"); A("s_cmp_ge_u32 s62, 2"); A("s_cbranch_scc1 L_noipf")
        A("s_mov_b32 s61, 120")
        A("s_getpc_b64 s[22:23]"); A("L_pc:")
        A("s_lshl_b32 s62, s62, 14"); A("v_lshlrev_b32 v14, 7, v1"); A("v_add_u32 v14, s62, v14"); A("v_add_u32 v15, 0x2000, v14"); A("v_min_u32 v15, L_codeend-L_pc-4, v15")
        A("global_load_dword a255, v14, s[22:23]"); A("global_load_dword a255, v15, s[22:23]")
        A("L_noipf:")
    else:
        A("s_mul_i32 s61, s3, 28"); A("s_add_u32 s61, s61, s57")
    A("s_mul_i32 s62, s61, 43"); A("s_lshr_b32 s62, s62, 8")
    A("s_mul_i32 s63, s62, 6"); A("s_sub_u32 s61, s61, s63"); A(f"s_add_u32 s65, s62, {T0}")
    A("s_lshl_b32 s62, s65, 2"); A("s_add_u32 s62, s62, s61"); A("s_lshl_b32 s62, s62, 15"); A("s_lshr_b32 s63, s56, 1"); A("s_lshl_b32 s63, s63, 9"); A("s_add_u32 s62, s62, s63")
    A("s_and_b32 s63, s56, 1"); A("s_lshl_b32 s63, s63, 1"); A("s_add_u32 s63, s63, s61"); A("s_sub_u32 s63, s63, 4"); A("s_lshl_b32 s63, s63, 17")
    A("s_lshl_b32 s60, s65, 7"); A("s_add_u32 s63, s63, s60")
    A("s_cmp_lt_u32 s61, 4"); A("s_cselect_b32 s23, s62, s63"); A("s_cselect_b64 vcc, -1, 0")
    A("v_cndmask_b32 v13, v9, v8, vcc")
    A("s_waitcnt lgkmcnt(0)")
    if diag:
        for i in range(1, 18): A(f"s_mov_b64 s[{66+2*i}:{67+2*i}], s[66:67]")
    A(f"s_cselect_b32 s{SU}, s12, s4"); A(f"s_cselect_b32 s{SU+1}, s13, s5"); A(f"s_mov_b32 s{SU+2}, {256*1024*2}"); A(f"s_cselect_b32 s{SU+2}, {1024*1024*2}, s{SU+2}"); A(f"s_mov_b32 s{SU+3}, 0x20000")
    A("s_mov_b32 s26, s23"); A("s_mov_b32 s27, s65")
    TB = P.get("TB", [10, 16, 16])
    def touch(k):
        if not P.get("TOUCH", 1): return
        lo = 0 if k == 0 else TB[k-1]
        A(f"s_sub_u32 s61, s27, {lo}"); A(f"s_cmp_ge_u32 s61, {TB[k]-lo}"); A(f"s_cbranch_scc1 L_td{k}")
        A(f"buffer_load_dword a255, v13, s[{SU}:{SU+3}], s26 offen")
        A(f"L_td{k}:")
    touch(0)
    if P.get("IPF") == 9:
        A("s_cmp_lg_u32 s3, 3"); A("s_cbranch_scc1 L_noipf")
        A(f"s_sub_u32 s61, s57, {P.get('IPJ', 26)}"); A("s_cmp_ge_u32 s61, 2"); A("s_cbranch_scc1 L_noipf")
        A("s_getpc_b64 s[96:97]"); A("L_pc:")
        A("s_lshl_b32 s61, s61, 13"); A("v_lshlrev_b32 v14, 7, v1"); A("v_add_u32 v14, s61, v14"); A("v_add_u32 v15, 0x4000, v14"); A("v_min_u32 v15, L_codeend-L_pc-4, v15")
        A("global_load_dword a255, v15, s[96:97]"); A("global_load_dword a255, v14, s[96:97]")
        A("L_noipf:")
    if P.get("IPF") == 5:
        A("s_getpc_b64 s[96:97]"); A("L_pc:")
        A("s_mul_i32 s61, s3, 28"); A("s_add_u32 s61, s61, s57"); A("s_lshl_b32 s61, s61, 8"); A("s_min_u32 s61, s61, L_codeend-L_pc-132")
        A("s_add_u32 s96, s96, s61"); A("s_addc_u32 s97, s97, 0")
        A("s_load_dword s98, s[96:97], 0"); A("s_load_dword s99, s[96:97], 128")
    if (0 if P.get("TM") else P.get("IPF", 3)) == 1:
        A("s_cmp_lg_u32 s3, 3"); A("s_cbranch_scc1 L_noipf")
        A(f"s_sub_u32 s61, s57, {P.get('IPJ', 6)}"); A(f"s_cmp_ge_u32 s61, {P.get('IPN', 4)}"); A("s_cbranch_scc1 L_noipf")
        A("s_getpc_b64 s[22:23]"); A("L_pc:")
        A("s_lshl_b32 s61, s61, 13"); A("v_lshlrev_b32 v14, 7, v1"); A("v_add_u32 v14, s61, v14"); A("v_min_u32 v14, L_codeend-L_pc-4, v14")
        A("global_load_dword a255, v14, s[22:23]")
        A("L_noipf:")
    A("s_lshl_b32 s61, s64, 7"); A(f"s_add_u32 s61, s61, {EP_OFF}"); A("s_add_u32 s22, s20, s61"); A("s_addc_u32 s23, s21, 0")
    A("s_load_dword s60, s[22:23], 0")
    srd(A, SQ, 6, 1024*3584*4); srd(A, SS, 8, 16*3584*2); srd(A, SZ, 10, 16*3584*2)
    A(f"s_mul_i32 s7, s3, {256*14336}"); A("s_lshl_b32 s62, s59, 8"); A("s_add_u32 s7, s7, s62")
    A(f"s_mul_i32 s8, s3, {4*7168}"); A("s_lshl_b32 s62, s59, 7"); A("s_add_u32 s8, s8, s62")
    QC = P.get("QC", 2)
    def gpos(i): return (i >> 1, i & 1) if QC == 2 else (i & 3, i >> 2)
    RQ = 160
    def scload():
        A("v_lshlrev_b32 v7, 3, v3")
        for gi in range(4):
            A(f"s_add_u32 s61, s58, {gi}"); A("s_and_b32 s61, s61, 3"); A("s_mul_i32 s61, s61, 7168"); A("s_add_u32 s62, s8, s61")
            A.vmem(f"buffer_load_dwordx2 v[{144+4*gi}:{145+4*gi}], v7, s[{SS}:{SS+3}], s62 offen", "q0")
            A.vmem(f"buffer_load_dwordx2 v[{146+4*gi}:{147+4*gi}], v7, s[{SZ}:{SZ+3}], s62 offen", "q0")
    def qload(s):
        gp, sub = gpos(s)
        A(f"s_add_u32 s61, s58, {gp}"); A("s_and_b32 s61, s61, 3"); A(f"s_mul_i32 s61, s61, {64*14336}"); A("s_add_u32 s61, s61, s7")
        for i in range(8):
            row = 32*sub + 16*(i>>2) + (i&3); r = RQ + 32*(s%3) + 4*i
            A(f"s_add_u32 s62, s61, {row*14336}")
            if P.get("QD", 5) and s < P.get("QDN", 2): A.wait_n(P.get("QD", 5) - 1)
            A.vmem(f"buffer_load_dwordx4 v[{r}:{r+3}], v5, s[{SQ}:{SQ+3}], s62 offen", f"q{s}")
    if P.get("MW", 0):
        A("s_waitcnt vmcnt(0)")
        if P.get("MW", 0) > 1: A(f"s_sleep {P['MW']}")
    if P.get("MS", 0): A(f"s_sleep {P['MS']}")
    A.stamp("t1")
    if P.get("QD", 5): scload(); A.vm = []
    qload(0); touch(1)
    if P.get("IPF") == 4:
        A("s_cmp_lg_u32 s3, 3"); A("s_cbranch_scc1 L_noipf")
        A(f"s_sub_u32 s61, s57, {P.get('IPJ', 6)}"); A(f"s_cmp_ge_u32 s61, {P.get('IPN', 4)}"); A("s_cbranch_scc1 L_noipf")
        A("s_getpc_b64 s[96:97]"); A("L_pc:")
        A("s_lshl_b32 s61, s61, 13"); A("v_lshlrev_b32 v14, 7, v1"); A("v_add_u32 v14, s61, v14"); A("v_min_u32 v14, L_codeend-L_pc-4, v14")
        A("global_load_dword a255, v14, s[96:97]")
        A("L_noipf:")
    if not P.get("QD", 5): scload()
    srd(A, SV, 14, 3584*3584*2); srd(A, SO, 16, 256*3584*2); srd(A, SW, 20, 0x10000000)
    A("s_lshr_b32 s9, s56, 1"); A("s_and_b32 s61, s56, 1"); A("s_mul_i32 s11, s61, 14"); A("s_lshr_b32 s61, s57, 1"); A("s_add_u32 s11, s11, s61")
    A("s_mul_i32 s65, s64, 28"); A("s_add_u32 s65, s65, s11")
    A("s_lshl_b32 s12, s65, 18"); A("s_lshl_b32 s61, s9, 14"); A("s_add_u32 s12, s12, s61"); A("s_lshl_b32 s61, s3, 12"); A("s_add_u32 s12, s12, s61")
    A(f"s_add_u32 s12, s12, {PART_OFF}")
    qload(1); touch(2)
    A("v_lshlrev_b32 v6, 2, v4"); A("v_xor_b32 v6, v6, v3"); A("v_lshlrev_b32 v6, 4, v6"); A("v_mul_u32_u24 v8, 7168, v4"); A("v_add_u32 v6, v6, v8")
    A("s_mul_i32 s14, s9, 896"); A("s_lshl_b32 s61, s3, 2"); A("s_add_u32 s14, s14, s61"); A("s_mul_i32 s14, s14, 7168")
    A("s_lshl_b32 s61, s11, 8"); A("s_add_u32 s14, s14, s61")
    A(f"s_mul_i32 s61, s64, {7*16*7168}"); A("s_sub_u32 s15, s14, s61"); A("s_add_u32 s14, s14, s61")
    A("s_lshl_b32 s18, s3, 10")
    A(f"s_mul_i32 s61, s64, {7*4096}"); A("s_add_u32 s16, s18, s61"); A("s_sub_u32 s17, s18, s61")
    def vdma_ops(n):
        odd = (n // 7) & 1
        return [f"s_add_u32 m0, s{16+odd}, {(n % 28)*4096}", f"s_add_u32 s62, s{14+odd}, {n*16*7168}",
                (f"buffer_load_dwordx4 v6, s[{SV}:{SV+3}], s62 offen lds", f"V{n//14}")]
    xb = [24, 25, 26, 27, 40, 41, 42, 43]
    A("s_lshl_b32 s19, s58, 5"); A("s_lshl_b32 s61, s3, 3"); A("s_add_u32 s19, s19, s61"); A("s_lshl_b32 s19, s19, 12")
    for i in range(8):
        gp, sub = gpos(i)
        A(f"s_add_u32 s61, s58, {gp}"); A("s_and_b32 s61, s61, 3"); A("s_lshl_b32 s61, s61, 13"); A("s_add_u32 s61, s61, s19"); A(f"s_add_u32 s{xb[i]}, s61, {sub*4096 + XR_OFF}")
    A("s_lshr_b32 s10, s57, 2"); A("s_add_u32 s10, s10, s3"); A("s_and_b32 s10, s10, 3")
    FP1 = P.get("FP1", 7)
    A("v_and_b32 v0, 3, v1"); A(f"v_lshlrev_b32 v0, {FP1}, v0")
    A("s_lshl_b32 s61, s64, 2"); A("s_add_u32 s61, s61, s3"); A(f"s_lshl_b32 s61, s61, {FP1+2}"); A(f"s_add_u32 s20, s61, {F1_OFF}")
    REP = P.get("REP", 1)
    A("s_lshl_b32 s61, s56, 12"); A("s_add_u32 s20, s20, s61")
    A("s_waitcnt lgkmcnt(0)"); A(f"s_add_u32 s60, s60, {TAGC}")
    def dq_ops(s):
        o = []
        if QC == 1 or s % 2 == 0:
            r = 144 + 4*gpos(s)[0]
            o += [f"v_lshlrev_b32 v8, 16, v{r}", f"v_and_b32 v9, 0xffff0000, v{r}", f"v_lshlrev_b32 v10, 16, v{r+1}", f"v_and_b32 v11, 0xffff0000, v{r+1}",
                  f"v_lshlrev_b32 v12, 16, v{r+2}", f"v_and_b32 v13, 0xffff0000, v{r+2}", f"v_lshlrev_b32 v14, 16, v{r+3}", f"v_and_b32 v15, 0xffff0000, v{r+3}"]
            o += [f"v_mul_f32 v{12+t}, -v{12+t}, v{8+t}" for t in range(4)]
        q = RQ + 32*(s%3); b = 16 + 16*s
        o += [f"v_cvt_f32_i32 v{q+e}, v{q+e}" for e in range(32)]
        o.append(".p2align 3")
        for i in range(8):
            for h2 in range(2):
                r = q + 4*i + 2*h2
                o.append(f"v_pk_fma_f32 v[{r}:{r+1}], v[{r}:{r+1}], v[{8+2*h2}:{9+2*h2}], v[{12+2*h2}:{13+2*h2}]")
        for t in range(4):
            for jj in range(4):
                o.append(f"v_cvt_pk_bf16_f32 v{b+4*t+jj}, v{q+8*jj+t}, v{q+8*jj+4+t}")
        return o
    def vread_ops(ks):
        base = (ks % 28)*4096; vr = 146 + base//65536; off = base % 65536
        return [f"ds_read_b64_tr_b16 a[{4*ks}:{4*ks+1}], v{vr} offset:{off}", f"ds_read_b64_tr_b16 a[{4*ks+2}:{4*ks+3}], v{vr} offset:{off+1024}"]
    pb = [4, 5, 7, 8]
    XA = 112
    DF = P.get("DF", 1); FP = P.get("FP", 2)
    def mid(c, VL, V1, V2, V2AT, V2P):
        nv = 0
        if VL:
            while nv < min(VL, 6): emit(vdma_ops(nv)); nv += 1
            A.wait_tag("q0"); emit(dq_ops(0)); A.stamp("dq0")
            A.wait_tag("q1")
            while nv < min(VL, 10): emit(vdma_ops(nv)); nv += 1
            emit(dq_ops(1)); A.stamp("dq1")
            while nv < VL: emit(vdma_ops(nv)); nv += 1
            qload(2); qload(3); qload(4); s0 = 2
        else:
            qload(2); s0 = 0
        for s in range(s0, 8):
            A.wait_tag(f"q{s}")
            dqo = dq_ops(s)
            if s == 7 and P.get("EP", -1) >= 0: dqo.insert(P["EP"], (f"buffer_load_dword v7, v0, {WS}, s20 offen sc1", "ep"))
            emit(dqo)
            if s + 3 < 8: qload(s+3)
            else:
                tgt = V1 if s == 7 else min(V1, VL + P.get("VS", 5)*(s-4))
                while nv < tgt: emit(vdma_ops(nv)); nv += 1
            A.stamp(f"dq{s}")
            if s == P.get("PTX", -1):
                A("s_mov_b32 s62, 0x90000"); A.vmem(f"buffer_load_dword a255, off, {WS}, s62 sc1", "pt")
                A("s_mov_b32 s62, 0x390000"); A.vmem(f"buffer_load_dword a255, off, {WS}, s62 sc1", "pt")
        for rp in range(4):
            A(f"s_add_u32 s62, s10, {rp}"); A("s_and_b32 s62, s62, 3"); A("s_lshl_b32 s62, s62, 10"); A(f"v_add_u32 v{8+rp}, s62, v2")
        for rp in range(1, 4):
            A(f"s_add_u32 s62, s3, {rp}"); A("s_and_b32 s62, s62, 3"); A("s_mul_i32 s62, s62, 12288"); A(f"s_add_u32 s62, s62, {0x1c000 + (rp-1)*4096}")
            A(f"v_add_u32 v{12+rp}, s62, v2")
        A("s_mul_i32 s62, s3, 12288"); A(f"s_add_u32 s62, s62, {0x1c000}"); A("v_add_u32 v12, s62, v2")
        A("v_lshlrev_b32 v144, 10, v4"); A("v_lshl_add_u32 v144, v3, 4, v144")
        A("s_lshl_b32 s61, s58, 1"); A("s_lshr_b32 s62, s10, 1"); A("s_add_u32 s61, s61, s62"); A("s_mul_i32 s61, s61, 224")
        A("s_lshl_b32 s62, s59, 2"); A("s_add_u32 s61, s61, s62"); A("s_lshl_b32 s61, s61, 10")
        A("s_and_b32 s62, s10, 1"); A("s_lshl_b32 s62, s62, 8"); A("s_add_u32 s61, s61, s62"); A(f"s_add_u32 s23, s61, {H_OFF}")
        A("s_lshl_b32 s19, s64, 2"); A("s_add_u32 s19, s19, s9"); A("s_lshl_b32 s19, s19, 12"); A(f"s_add_u32 s19, s19, {F2_OFF}")
        A("s_mul_i32 s61, s9, 14"); A("s_sub_u32 s61, s59, s61"); A("s_lshl_b32 s61, s61, 1"); A("s_and_b32 s62, s58, 1"); A("s_add_u32 s61, s61, s62")
        A(f"s_lshl_b32 s61, s61, {FP}"); A("s_add_u32 s21, s61, s19")
        A("v_lshrrev_b32 v146, 5, v1"); A("v_lshlrev_b32 v146, 11, v146"); A("v_bfe_u32 v147, v1, 2, 2"); A("v_lshl_add_u32 v146, v147, 8, v146")
        A("v_xor_b32 v147, s3, v147"); A("v_lshl_add_u32 v146, v147, 6, v146"); A("v_bfe_u32 v147, v1, 4, 1"); A("v_lshl_add_u32 v146, v147, 5, v146")
        A("v_and_b32 v147, 3, v1"); A("v_lshl_add_u32 v146, v147, 3, v146")
        A("v_add_u32 v147, 0x10000, v146")
        if DF:
            A("v_min_u32 v145, 27, v1"); A(f"v_lshlrev_b32 v145, {FP}, v145"); A(f"v_xor_b32 v148, {1<<FP}, v145"); A("v_cmp_eq_u32 vcc, s61, v145"); A("s_and_b32 s61, s56, 1"); A("s_lshl_b32 s61, s61, 15")
            A("v_cndmask_b32 v145, v145, v148, vcc"); A("s_add_u32 s19, s19, s61")
        A.stamp("dequant")
        poll(A, f"L_poll1{c}", "v0", "s20", pre=P.get("EP", -1) >= 0)
        A.stamp("flags1")
        order = [(rt, s) for rt in (1, 2, 3, 0) for s in range(8)]
        aq = [(f"buffer_load_dwordx4 a[{XA+16*s+4*rt}:{XA+16*s+4*rt+3}], v{8+rt}, {WS}, s{xb[s]} offen {P.get('XF','sc1')}", f"a{rt}_{s}") for rt, s in order]
        for i in range(P.get("NA0", 12)): emit([aq.pop(0)])
        A("v_mov_b32 v0, 0"); A("v_mov_b32 v7, s60")
        vr_next = 0; vfree = 0
        if V2 > 28:
            assert nv == 28
            A("s_barrier")
            for ks in range(28): emit(vread_ops(ks))
            vr_next = 28
        wq = []; delay = 0; nm = 0
        for idx, (rt, s) in enumerate(order):
            A.wait_tag(f"a{rt}_{s}")
            A.stamp(f"i{idx}")
            if vr_next and idx == 8:
                A("s_waitcnt lgkmcnt(0)"); A("s_barrier"); vfree = 28
            if (rt, s) == (0, P.get("B2AT", 4)):
                while wq: A(wq.pop(0))
                A("s_waitcnt lgkmcnt(0)"); A("s_barrier")
                A.stamp("b2")
                wq = [f"ds_read_b128 v[{160+4*i}:{163+4*i}], v12 offset:{i*1024}" for i in range(12)]
            for t in range(4):
                d = 208 + 4*t if rt == 0 else 160 + ((rt-1)*4+t)*4
                acc = f"v[{d}:{d+3}]"
                c_ = "0" if s == 0 else acc
                A(f"v_mfma_f32_16x16x32_bf16 {acc}, v[{16+16*s+4*t}:{19+16*s+4*t}], a[{XA+16*s+4*rt}:{XA+16*s+4*rt+3}], {c_}")
                nm += 1
                if wq and delay <= 0: A(wq.pop(0))
                delay -= 1
                if t in (1, 3) and aq: emit([aq.pop(0)])
                elif nv < V2 and idx >= V2AT and nm % V2P == 2: emit(vdma_ops(nv)); nv += 1
            if s == 7 and rt != 0:
                wq += [f"ds_write_b128 v{12+rt}, v[{160+((rt-1)*4+t)*4}:{163+((rt-1)*4+t)*4}] offset:{t*1024}" for t in range(4)]
                delay = 8
        while wq: A(wq.pop(0))
        A.stamp("g2mfma")
        A("s_waitcnt lgkmcnt(0)")
        A(".p2align 3")
        for o in (176, 192, 208):
            for e in range(0, 16, 2): A(f"v_pk_add_f32 v[{160+e}:{161+e}], v[{160+e}:{161+e}], v[{o+e}:{o+e+1}]")
        for r in range(4):
            for h2 in range(2):
                A(f"v_cvt_pk_bf16_f32 v{224+2*r+h2}, v{160+4*(2*h2)+r}, v{160+4*(2*h2+1)+r}")
        A.vmem(f"buffer_store_dwordx4 v[224:227], v144, {WS}, s23 offen sc1", "hst")
        A.vmem(f"buffer_store_dwordx4 v[228:231], v144, {WS}, s23 offen offset:512 sc1", "hst")
        landed = (min(nv, 28) // 14) * 14
        A.wait_tag("hst")
        A("s_barrier")
        A("s_cmp_lg_u32 s3, 0"); A(f"s_cbranch_scc1 L_f2done{c}")
        A("v_lshlrev_b32 v8, 15, v1"); A("s_mov_b64 exec, 3"); A(f"buffer_store_dword v7, v8, {WS}, s21 offen sc1"); A("s_mov_b64 exec, -1")
        A(f"L_f2done{c}:")
        A.stamp("g2pub")
        if DF:
            assert vr_next == 0 and landed == 14 and V3 == 28
            if P.get("PRE2", 1):
                A("s_cmp_lg_u32 s3, 3"); A("s_cbranch_scc1 L_nopre2"); A(f"buffer_load_dword v14, v145, {WS}, s19 offen sc1"); A("L_nopre2:")
            npost = 28 - nv
            while nv < 28: emit(vdma_ops(nv)); nv += 1
            for ks in range(14): emit(vread_ops(ks))
            return npost
        while nv < min(V3, 28 + vfree): emit(vdma_ops(nv)); nv += 1
        for ks in range(vr_next, landed): emit(vread_ops(ks))
        vr_next = max(vr_next, landed)
        while vr_next < 28 or (vfree < 28 and nv < V3):
            if vr_next == vfree:
                A.wait_tag(f"V{vr_next//14}"); A("s_barrier")
                for ks in range(vr_next, vr_next + 14): emit(vread_ops(ks))
                vr_next += 14
            if nv < V3:
                A("s_waitcnt lgkmcnt(0)"); A("s_barrier"); vfree = vr_next
                while nv < min(V3, 28 + vfree): emit(vdma_ops(nv)); nv += 1
            else: vfree = vr_next
        assert nv == V3 and vr_next == 28
    vm0 = list(A.vm); st0 = list(A.stnames)
    if P.get("CL"): A("s_bitcmp1_b32 s57, 1"); A("s_cbranch_scc1 L_late")
    npost = mid("E", *P.get("CE", [0, 14, 21, 16, 4]))
    vmE = list(A.vm)
    if P.get("CL"):
        A("s_branch L_fjoin")
        A("L_late:")
        A.vm = list(vm0); A.stnames = list(st0)
        mid("L", *P["CL"])
        A("L_fjoin:")
    lo, sh = (vmE, A.vm) if len(vmE) >= len(A.vm) else (A.vm, vmE)
    assert lo[len(lo)-len(sh):] == sh
    A.vm = list(lo); nv = V3; vr_next = vis = 14 if DF else 28; vfree1 = not DF
    A("s_add_u32 s10, s9, s11"); A("s_and_b32 s10, s10, 3")
    for p in range(4):
        A(f"s_add_u32 s61, s10, {p+1}"); A("s_and_b32 s61, s61, 3"); A("s_lshl_b32 s62, s64, 2"); A("s_add_u32 s61, s61, s62")
        A("s_mul_i32 s61, s61, 224"); A("s_mul_i32 s62, s9, 56"); A("s_add_u32 s61, s61, s62"); A("s_add_u32 s61, s61, s3")
        A(f"s_lshl_b32 s61, s61, 10"); A(f"s_add_u32 s{pb[p]}, s61, {H_OFF}")
    A("v_add_u32 v13, 0x10000, v2"); A("v_add_u32 v15, 0x20000, v2")
    A("s_lshl_b32 s20, s65, 18"); A("s_lshl_b32 s61, s9, 16"); A("s_add_u32 s20, s20, s61"); A("s_lshl_b32 s61, s3, 12"); A("s_add_u32 s20, s20, s61")
    A(f"s_add_u32 s20, s20, {PART_OFF}")
    A("v_min_u32 v12, 27, v1"); A(f"v_lshlrev_b32 v12, {FP}, v12")
    A("v_and_b32 v9, 31, v1"); A("v_mul_u32_u24 v9, 7168, v9"); A("v_lshrrev_b32 v10, 5, v1"); A("v_lshl_add_u32 v9, v10, 4, v9")
    A("s_lshl_b32 s61, s64, 2"); A("s_add_u32 s61, s61, s10"); A(f"s_mul_i32 s61, s61, {32*7168}")
    A("s_lshl_b32 s62, s11, 8"); A("s_add_u32 s61, s61, s62"); A("s_lshl_b32 s62, s3, 6"); A("s_add_u32 s23, s61, s62")
    A("v_and_b32 v8, 3, v1"); A("v_mul_u32_u24 v8, 0x14000, v8"); A("s_lshl_b32 s21, s65, 18"); A(f"s_add_u32 s21, s21, {PART_OFF}")
    for k in range(3):
        if P.get("SELF"):
            A(f"s_add_u32 s61, s9, {k+1}"); A("s_and_b32 s61, s61, 3"); A("s_lshl_b32 s61, s61, 16"); A(f"s_add_u32 s{24+k}, s61, s12"); A(f"s_xor_b32 s{24+k}, s{24+k}, 0x40000")
        else:
            A(f"s_add_u32 s61, s9, {3-k}"); A("s_and_b32 s61, s61, 3"); A("s_lshl_b32 s61, s61, 14"); A(f"s_add_u32 s{24+k}, s61, s20")
    A("s_waitcnt lgkmcnt(0)")
    A.stamp("vb1")
    if not DF: A("s_and_b32 s61, s56, 1"); A("s_lshl_b32 s61, s61, 15"); A("s_add_u32 s19, s19, s61")
    if P.get("ONEP", 1):
        A("s_cmp_lg_u32 s3, 3"); A("s_cbranch_scc1 L_poll2_x")
        keep = list(A.vm)
        if DF and P.get("PRE2", 1):
            A(f"s_waitcnt vmcnt({npost})"); A("v_cmp_ne_u32 vcc, s60, v14"); A("s_cbranch_vccz L_poll2_x")
        poll(A, "L_poll2", "v145" if DF else "v12", "s19", "v14", slp=P.get("SLP", 0))
        A.vm = keep
        A("s_barrier")
    else: poll(A, "L_poll2", "v12", "s19", "v14", slp=P.get("SLP", 0))
    A.stamp("flags2")
    A("v_mul_u32_u24 v12, 37, v1"); A("v_add_u32 v12, s60, v12"); A("v_and_b32 v12, 0xff, v12"); A("s_mov_b32 s27, 0xffffff00")
    groups = []
    for kb in range(X//4):
        for p in range(3): groups.append((p, 4*kb))
    for p in range(3):
        for kb in range(X//4, 14): groups.append((p, 4*kb))
    for kb in range(14): groups.append((3, 4*kb))
    frags = [(p, k0+i) for (p, k0) in groups for i in range(4)]
    NG = len(groups); NFR = len(frags)
    SGG = P.get("SGG", 2); AH = P.get("AH", 8); AH0 = P.get("AH0", 6); AH2 = P.get("AH2", 16); LA = P.get("LA", 4)
    free = list(range(28, 40)); slot = {}
    def hdma_ops(g):
        p, k0 = groups[g]; slot[g] = free.pop(0)
        return [f"s_add_u32 m0, s18, {slot[g]*4096}", f"s_add_u32 s62, s{pb[p]}, {k0*1024}",
                (f"buffer_load_dwordx4 v2, {WS}, s62 offen {P.get('HF','sc1')} lds", f"h{g}")]
    lg = []
    def ds(s_, tag): A(s_); lg.append(tag)
    def lwait(tag):
        idx = [i for i, t in enumerate(lg) if t == tag]
        if idx:
            n = min(len(lg) - 1 - idx[-1], 15)
            A(f"s_waitcnt lgkmcnt({n})"); del lg[:len(lg)-n]
    hnext = 0
    for g in range(AH0): emit(hdma_ops(g)); hnext += 1
    for _ in range(P.get("VP", 0)): emit(vdma_ops(nv)); nv += 1
    side = []; ready = -1; released = -1
    vrel = set()
    last_of_pass = {}
    for i, (p, ks) in enumerate(frags): last_of_pass[p] = i
    needf = {b: min(i for i, (p_, k_) in enumerate(frags) if k_ >= 14*b) for b in (1, 2, 3)}
    nread = 0
    VRATE = P.get("VRATE", 2)
    S0 = P.get("S0", 2); CF = P.get("CF", 64); PE = P.get("PE", 100); PW = P.get("PW", 12)
    PLS = P.get("PLS", [140, 184, 204])
    srcb = [24, 25, 26]; vq_ = []; PSTF = P.get("PSTF", "sc1")
    def pload(k):
        return [[(f"buffer_load_dwordx4 v[{192+16*k+4*qd}:{195+16*k+4*qd}], v2, {WS}, s{srcb[k]} offen offset:{qd*1024} sc1", f"pl{k}")] for qd in range(4)]
    for f, (p, ks) in enumerate(frags):
        while nread < min(NFR, f + 1 + LA):
            g = nread // 4
            if g > ready:
                tgt = min(NG - 1, g + SGG - 1)
                while hnext <= tgt: emit(hdma_ops(hnext)); hnext += 1
                A.wait_tag(f"h{tgt}")
                for b in (1, 2, 3):
                    if nv >= 14*(b+1) and f >= needf[b] - P.get("WM", 14): A.wait_tag(f"V{b}")
                A("s_barrier")
                ready = tgt
                while released < f // 4 - 1:
                    released += 1; free.append(slot[released])
                for b in (1, 2, 3):
                    if nv >= 14*(b+1) and f"V{b}" not in A.vm: vis = max(vis, 14*(b+1))
                    if b not in vrel and vr_next >= 14*(b+1) and not any(t == f"W{k}" for t in lg for k in range(14*b, 14*b+14)):
                        vrel.add(b)
                        if b == 1: vfree1 = True
                        else: free.extend(range(14*(b-2), 14*(b-2)+14))
            r = 96 + 4*(nread % 8); base = slot[g]*4096 + (nread % 4)*1024
            ds(f"ds_read_b128 v[{r}:{r+3}], v{[2,13,15][base//65536]} offset:{base % 65536}", f"A{nread}")
            nread += 1
        while vr_next <= ks:
            assert vr_next < vis, (f, ks, vr_next, vis)
            for o in vread_ops(vr_next): ds(o, f"W{vr_next}")
            vr_next += 1
        lwait(f"W{ks}")
        lwait(f"A{f}")
        d = 16 + 16*p; r = 96 + 4*(f % 8)
        c = "0" if ks == 0 else f"v[{d}:{d+15}]"
        A(f"v_mfma_f32_32x32x16_bf16 v[{d}:{d+15}], a[{4*ks}:{4*ks+3}], v[{r}:{r+3}], {c}")
        if A.stamp(f"f{f}"): lg.clear()
        did = False
        ah = AH2 if nv == 56 else AH
        if P.get("HR"): ah = AH2 if (f % P["HR"] == 1 and f >= P.get("HR0", 0)) else P.get("AHL", AH)
        hok = hnext < NG and hnext <= ready + ah and free
        VW = [[P["VS3"][0]+P["VS3"][1]*i_, 1] for i_ in range(56-V3)] if P.get("VS3") else P.get("VW")
        if VW and nv < 56 and any(a_ <= f < a_ + n_ for a_, n_ in VW):
            assert nv < 42 or vfree1, f
            emit(vdma_ops(nv)); nv += 1; did = True
        if not did and side and (f % 2 == 0 or not hok or P.get("FS", 1)):
            emit(side.pop(0)); did = True
        if not did and hok:
            emit(hdma_ops(hnext)); hnext += 1; did = True
        if not did and not VW and nv < 56 and f % VRATE == 0:
            emit(vdma_ops(nv)); nv += 1; did = True
        FS = P.get("FS", 1); o1, o2, o3 = (2, 3, 1) if FS else (4, 7, 2)
        for _ in range(4 if FS else 2):
            if vq_: A(vq_.pop(0))
        if vr_next < vis:
            for o in vread_ops(vr_next): ds(o, f"W{vr_next}")
            vr_next += 1
        for pp in range(3):
            dd = 16 + 16*pp
            if f == last_of_pass[pp] + o1:
                vq_ += [f"v_and_or_b32 v{dd+e}, v{dd+e}, s27, v12" for e in range(16)]
            if f == last_of_pass[pp] + o2:
                side.append([f"s_add_u32 s61, s9, {pp+1}", "s_and_b32 s61, s61, 3", "s_lshl_b32 s61, s61, 16", "s_add_u32 s22, s61, s12",
                             (f"buffer_store_dwordx4 v[{dd}:{dd+3}], v2, {WS}, s22 offen {PSTF}", f"pst{pp}")])
            for qd in range(1, 4):
                if f == last_of_pass[pp] + o2 + o3*qd:
                    side.append([(f"buffer_store_dwordx4 v[{dd+4*qd}:{dd+4*qd+3}], v2, {WS}, s22 offen offset:{qd*1024} {PSTF}", f"pst{pp}")])
        for k in range(3):
            if f == PLS[k]: side.extend(pload(k))
        if f == P.get("PTP", -1): side.append([(f"buffer_load_dword a255, v8, {WS}, s21 offen sc1", "pt")])
        if f == P.get("PTO", -1): side.append(["s_mov_b64 exec, 0x1010101", (f"buffer_load_dword a255, v9, s[{SO}:{SO+3}], s23 offen", "pt"), "s_mov_b64 exec, -1"])
    while side: emit(side.pop(0))
    assert nv == 56 and vr_next == 56 and hnext == NG
    A.stamp("g3mfma")
    for k in range(3):
        A(f"s_mov_b32 s63, {2000 if P.get('SELF') else 100000}")
        b = 192 + 16*k
        A.wait_tag(f"pl{k}")
        A(f"L_chk{k}:")
        for e in range(16): A(f"v_xor_b32 v{176+e}, v{b+e}, v12")
        A("v_or3_b32 v10, v176, v177, v178"); A("v_or3_b32 v11, v179, v180, v181")
        for e in range(182, 190, 4):
            A(f"v_or3_b32 v10, v10, v{e}, v{e+1}"); A(f"v_or3_b32 v11, v11, v{e+2}, v{e+3}")
        A("v_or3_b32 v10, v10, v190, v191"); A("v_or_b32 v10, v10, v11"); A("v_and_b32 v10, 0xff, v10")
        A("v_cmp_ne_u32 vcc, 0, v10")
        A(f"s_cbranch_vccz L_chk{k}_x")
        A("s_sub_u32 s63, s63, 1"); A(f"s_cbranch_scc1 L_chk{k}_x")
        for qd in range(4): A(f"buffer_load_dwordx4 v[{b+4*qd}:{b+4*qd+3}], v2, {WS}, s{24+k} offen offset:{qd*1024} sc1")
        A("s_waitcnt vmcnt(0)")
        A(f"s_branch L_chk{k}")
        A(f"L_chk{k}_x:")
        A.stamp(f"pl{k}")
        A(".p2align 3")
        for e in range(0, 16, 2): A(f"v_pk_add_f32 v[{64+e}:{65+e}], v[{64+e}:{65+e}], v[{176+e}:{177+e}]")
    for e in range(8): A(f"v_cvt_pk_bf16_f32 v{96+e}, v{64+2*e}, v{65+2*e}")
    A("s_nop 1")
    A("v_permlane32_swap_b32 v96, v98"); A("v_permlane32_swap_b32 v97, v99")
    A("v_permlane32_swap_b32 v100, v102"); A("v_permlane32_swap_b32 v101, v103")
    A(f"buffer_store_dwordx4 v[96:99], v9, s[{SO}:{SO+3}], s23 offen {P.get('OST','')}")
    A(f"buffer_store_dwordx4 v[100:103], v9, s[{SO}:{SO+3}], s23 offen offset:32 {P.get('OST','')}")
    A("s_lshr_b32 s61, s57, 1"); A("s_or_b32 s61, s61, s56"); A("s_or_b32 s61, s61, s3"); A("s_cmp_lg_u32 s61, 0"); A("s_cbranch_scc1 L_noep")
    A("s_lshl_b32 s61, s64, 7"); A(f"s_add_u32 s61, s61, {EP_OFF}")
    emit(flag_ops("s61", "v0", "v7", "x"))
    A("L_noep:")
    if diag: A("s_waitcnt vmcnt(0)")
    A.stamp("end")
    A("s_branch L_fin")
    A("L_g1:")
    A.vm = []
    A("s_and_b32 s64, s56, 1")
    A("s_lshr_b32 s59, s56, 1"); A("s_lshl_b32 s59, s59, 2"); A("s_add_u32 s59, s59, s57"); A("s_sub_u32 s59, s59, 28")
    A("v_lshrrev_b32 v11, 3, v1"); A("v_and_b32 v12, 7, v1"); A("v_and_b32 v13, 2, v11"); A("v_xor_b32 v13, v12, v13")
    A("v_lshlrev_b32 v14, 11, v11"); A("v_lshl_add_u32 v9, v13, 4, v14"); A("v_xor_b32 v10, 64, v9")
    A("v_lshrrev_b32 v13, 1, v11"); A("v_xor_b32 v13, v12, v13"); A("v_lshl_add_u32 v8, v13, 4, v14"); A("v_xor_b32 v11, 64, v8")
    A("s_lshl_b32 s58, s3, 15"); A("s_lshl_b32 s62, s59, 7"); A("s_add_u32 s58, s58, s62")
    A("s_lshl_b32 s65, s64, 2"); A("s_add_u32 s65, s65, s3"); A("s_lshl_b32 s65, s65, 16")
    A("s_waitcnt lgkmcnt(0)")
    if diag:
        for i in range(1, 18): A(f"s_mov_b64 s[{66+2*i}:{67+2*i}], s[66:67]")
    srd(A, SX, 4, 256*1024*2); srd(A, SU, 12, 1024*1024*2)
    A("s_lshl_b32 s4, s3, 11"); A("s_lshl_b32 s5, s3, 12"); A("s_add_u32 s5, s5, 8192")
    NS = 6; STG = 24576; G1D = P.get("G1D", 3)
    def g1_ops(st):
        o = []
        for i in range(2):
            o.append([f"s_add_u32 m0, s4, {(st % NS)*STG + i*1024}", f"s_add_u32 s62, s58, {st*64*2048 + i*8*2048}",
                      (f"buffer_load_dwordx4 v{9+i}, s[{SU}:{SU+3}], s62 offen lds", f"g{st}")])
        for i in range(4):
            o.append([f"s_add_u32 m0, s5, {(st % NS)*STG + i*1024}", f"s_add_u32 s62, s65, {st*128 + i*8*2048}",
                      (f"buffer_load_dwordx4 v{[8,11][i&1]}, s[{SX}:{SX+3}], s62 offen lds", f"g{st}")])
        return o
    for st in range(G1D):
        for o in g1_ops(st): emit(o)
    A("s_lshl_b32 s61, s64, 7"); A(f"s_add_u32 s61, s61, {EP_OFF}"); A("s_add_u32 s22, s20, s61"); A("s_addc_u32 s23, s21, 0")
    A("s_load_dword s60, s[22:23], 0")
    srd(A, SV, 14, 3584*3584*2); srd(A, SW, 20, 0x10000000)
    A("v_lshrrev_b32 v50, 2, v3"); A("v_and_b32 v51, 3, v3"); A("v_lshlrev_b32 v52, 10, v4")
    A("v_lshl_add_u32 v52, v50, 7, v52"); A("v_lshl_add_u32 v52, v51, 3, v52")
    A("v_lshrrev_b32 v53, 1, v50"); A("v_and_b32 v51, 1, v4"); A("v_lshl_add_u32 v53, v51, 1, v53"); A("v_lshlrev_b32 v53, 5, v53")
    for t in range(4):
        A(f"v_xor_b32 v{16+3*t}, {32*t}, v53"); A(f"v_add_u32 v{16+3*t}, v{16+3*t}, v52")
        A(f"v_add_u32 v{17+3*t}, {2*STG}, v{16+3*t}"); A(f"v_add_u32 v{18+3*t}, {4*STG}, v{16+3*t}")
    A("v_lshrrev_b32 v50, 1, v3"); A("v_xor_b32 v50, v50, v4"); A("v_lshlrev_b32 v50, 4, v50"); A("v_lshl_add_u32 v50, v3, 7, v50")
    A("v_add_u32 v28, s5, v50"); A("v_xor_b32 v50, 64, v50"); A("v_add_u32 v31, s5, v50")
    for par in range(2):
        A(f"v_add_u32 v{29+3*par}, {2*STG}, v{28+3*par}"); A(f"v_add_u32 v{30+3*par}, {4*STG}, v{28+3*par}")
    A("s_waitcnt lgkmcnt(0)"); A(f"s_add_u32 s60, s60, {TAGC}")
    def g1reads(s):
        st = s // 2; win = (st % NS)//2; o0 = ((st % NS) % 2)*STG; b = 112 + 16*(s&1); xa = 96 + 8*(s&1)
        o = [f"ds_read_b128 v[{xa+4*rt}:{xa+4*rt+3}], v{28+3*(s&1)+win} offset:{o0 + rt*2048}" for rt in range(2)]
        for t in range(4):
            o.append(f"ds_read_b64_tr_b16 v[{b+4*t}:{b+4*t+1}], v{16+3*t+win} offset:{o0 + (s&1)*4096}")
            o.append(f"ds_read_b64_tr_b16 v[{b+4*t+2}:{b+4*t+3}], v{16+3*t+win} offset:{o0 + (s&1)*4096 + 512}")
        return o
    A.wait_tag("g0"); A("s_barrier")
    A.stamp("g1s0")
    for o in g1reads(0): A(o)
    dq_ = []
    for s in range(32):
        if s % 2 == 0 and s//2 + G1D < 16: dq_ += g1_ops(s//2 + G1D)
        rd = []
        if s + 1 < 32:
            if (s + 1) % 2 == 0:
                A.wait_tag(f"g{(s+1)//2}"); A("s_barrier")
            rd = g1reads(s + 1)
        A("s_waitcnt lgkmcnt(0)")
        b = 112 + 16*(s&1); xa = 96 + 8*(s&1)
        for t in range(4):
            for rt in range(2):
                d = 64 + (rt*4+t)*4
                c = "0" if s == 0 else f"v[{d}:{d+3}]"
                A(f"v_mfma_f32_16x16x32_bf16 v[{d}:{d+3}], v[{b+4*t}:{b+4*t+3}], v[{xa+4*rt}:{xa+4*rt+3}], {c}")
                k = t*2 + rt
                if k < 5:
                    for _ in range(2):
                        if rd: A(rd.pop(0))
                elif dq_: emit(dq_.pop(0))
        A.stamp(f"g1s{s+1}")
    A.stamp("g1mfma")
    A("s_lshl_b32 s61, s64, 1"); A("s_lshr_b32 s62, s3, 1"); A("s_add_u32 s61, s61, s62"); A("s_lshl_b32 s61, s61, 5")
    A("s_lshl_b32 s62, s59, 1"); A("s_add_u32 s61, s61, s62"); A("s_lshl_b32 s61, s61, 2"); A("s_and_b32 s62, s3, 1"); A("s_lshl_b32 s62, s62, 1")
    A("s_add_u32 s61, s61, s62"); A("s_lshl_b32 s61, s61, 10"); A("s_add_u32 s62, s61, 4096")
    for e in range(16): A(f"v_cvt_pk_bf16_f32 v{96+e}, v{64+2*e}, v{65+2*e}")
    for rt in range(2):
        for sp in range(2):
            r = 96 + rt*8 + sp*4
            A.vmem(f"buffer_store_dwordx4 v[{r}:{r+3}], v2, {WS}, s{61+sp} offen offset:{rt*1024} sc1", "xst")
    A("s_lshl_b32 s61, s64, 4"); A("s_add_u32 s61, s61, s59"); A(f"s_lshl_b32 s61, s61, {FP1}"); A(f"s_add_u32 s61, s61, {F1_OFF}")
    A("v_mov_b32 v8, 0"); A("v_mov_b32 v7, s60")
    A.wait_all(); A("s_barrier")
    A("s_cmp_lg_u32 s3, 0"); A("s_cbranch_scc1 L_f1done")
    if REP:
        A("v_lshlrev_b32 v8, 12, v1"); A("s_mov_b64 exec, 0xff"); A(f"buffer_store_dword v7, v8, {WS}, s61 offen sc1"); A("s_mov_b64 exec, -1")
    else: emit(flag_ops("s61", "v8", "v7", "x"))
    A("L_f1done:")
    A.stamp("g1pub")
    R0 = P.get("SPR0", 448); NR = P.get("SPN", 14)
    if NR:
        A("v_cmp_lt_u32 vcc, 27, v1"); A("s_nop 1"); A("v_cndmask_b32 v8, 0, 1, vcc"); A("v_mul_u32_u24 v9, 28, v8"); A("v_sub_u32 v9, v1, v9")
        A("v_lshlrev_b32 v9, 7, v9"); A("v_mul_u32_u24 v8, 7168, v8"); A("v_add_u32 v8, v8, v9")
        A("s_sub_u32 s61, s57, 28"); A("s_lshl_b32 s61, s61, 2"); A("s_add_u32 s61, s61, s3"); A("s_lshl_b32 s61, s61, 1")
        A("s_lshr_b32 s62, s56, 1"); A("s_mul_i32 s62, s62, 896"); A("s_add_u32 s61, s61, s62"); A(f"s_add_u32 s61, s61, {R0}"); A("s_mul_i32 s61, s61, 7168")
        A("s_mul_i32 s62, s64, 3584"); A("s_add_u32 s61, s61, s62")
        A("s_mov_b32 exec_hi, 0xffffff")
        for i in range(NR):
            A(f"buffer_load_dword v{10+(i&1)}, v8, s[{SV}:{SV+3}], s61 offen")
            A(f"s_add_u32 s61, s61, {32*7168}")
            A("s_waitcnt vmcnt(1)")
        A("s_mov_b64 exec, -1")
    A("L_fin:")
    if diag:
        A("s_lshl_b32 s61, s2, 2"); A("s_add_u32 s61, s61, s3"); A("s_lshl_b32 s61, s61, 7"); A(f"s_add_u32 s61, s61, {STAMP_OFF}")
        A("v_mov_b32 v8, 0")
        for i in range(len(A.stnames)):
            A(f"v_mov_b32 v7, s{66+2*i}"); A(f"buffer_store_dword v7, v8, {WS}, s61 offen offset:{4*i}")
    A("L_end:"); A("s_endpgm"); A("L_codeend:")
    A('.section .rodata,"a"'); A(".p2align 6"); A(f".amdhsa_kernel {NAME}")
    A("  .amdhsa_next_free_vgpr 512"); A("  .amdhsa_next_free_sgpr 102"); A("  .amdhsa_accum_offset 256")
    A("  .amdhsa_group_segment_fixed_size 0"); A("  .amdhsa_kernarg_size 72"); A("  .amdhsa_user_sgpr_count 2")
    A("  .amdhsa_user_sgpr_kernarg_segment_ptr 1"); A("  .amdhsa_system_sgpr_workgroup_id_x 1"); A(".end_amdhsa_kernel")
    return A
if __name__ == "__main__":
    import json
    out = sys.argv[1]; diag = len(sys.argv) > 2 and sys.argv[2] == "diag"
    P = json.loads(sys.argv[3]) if len(sys.argv) > 3 else {}
    A = gen(diag, P); open(out, "w").write(A.text())
    if diag: print(A.stnames)
```

```python
import sys
NAME = "standalone__weight_only_int_quip__sampling_kernel"
XR_OFF   = 0x000000
H_OFF    = 0x100000
EP_OFF   = 0x300000
F1_OFF   = 0x310000
F2_OFF   = 0x320000
F3_OFF   = 0x380000
PART_OFF = 0x1000000
STAMP_OFF = 0x800000
TAGC = 0x9E3779B9
def is_main(wg): return True
def is_H(wg): return ((wg >> 4) & 1) == 0
def is_main(wg): return (wg >> 3) < 28

class Asm:
    def __init__(self, diag=False):
        self.L = []; self.vm = []; self.diag = diag; self.stnames = ["start"]; self.clk = "s_memrealtime"; self.only = None
    def __call__(self, s): self.L.append(s)
    def text(self): return "\n".join(self.L) + "\n"
    def vmem(self, s, tag):
        if len(self.vm) >= 63: self.wait_n(62)
        self.L.append(s); self.vm.append(tag)
    def wait_n(self, n):
        if len(self.vm) > n:
            self.L.append(f"s_waitcnt vmcnt({n})"); self.vm = self.vm[len(self.vm)-n:] if n else []
    def wait_tag(self, tag):
        idx = [i for i, t in enumerate(self.vm) if t == tag]
        if idx: self.wait_n(len(self.vm) - 1 - idx[-1])
    def wait_all(self): self.wait_n(0)
    def stamp(self, name):
        if not self.diag or name not in self.only: return False
        r = 66 + 2*len(self.stnames); assert r + 1 < 102
        self.L.append(f"{self.clk} s[{r}:{r+1}]"); self.L.append("s_waitcnt lgkmcnt(0)")
        self.stnames.append(name); return True
    def emit(self, ops):
        for o in ops:
            if isinstance(o, tuple): self.vmem(o[0], o[1])
            else: self(o)

def srd(A, d, b, nbytes):
    A(f"s_mov_b32 s{d}, s{b}"); A(f"s_mov_b32 s{d+1}, s{b+1}"); A(f"s_mov_b32 s{d+2}, {nbytes}"); A(f"s_mov_b32 s{d+3}, 0x20000")

SX, SQ, SS, SZ, SU, SV, SO, SW = 24, 28, 32, 36, 40, 44, 48, 52
WS = f"s[{SW}:{SW+3}]"
def poll(A, label, voff, soff, vt="v7", slp=0, pre=False):
    A("s_mov_b32 s63, 100000")
    if pre: A(f"s_branch {label}_w")
    A(f"{label}:")
    A(f"buffer_load_dword {vt}, {voff}, {WS}, {soff} offen sc1")
    A(f"{label}_w:")
    A("s_sub_u32 s63, s63, 1")
    A(f"s_cbranch_scc1 {label}_x")
    A("s_waitcnt vmcnt(0)")
    A(f"v_cmp_ne_u32 vcc, s60, {vt}")
    if slp:
        A(f"s_cbranch_vccz {label}_x"); A(f"s_sleep {slp}"); A(f"s_branch {label}")
    else: A(f"s_cbranch_vccnz {label}")
    A(f"{label}_x:")
    A.vm = []
def flag_ops(soff, vz, vt, tag):
    return ["s_mov_b64 exec, 1", (f"buffer_store_dword {vt}, {vz}, {WS}, {soff} offen sc1", tag), "s_mov_b64 exec, -1"]

def gen(diag=False, P=None):
    P = dict(P or {})
    return gen_(diag, P)
def gen_(diag=False, P=None):
    P = P or {}
    A = Asm(diag); emit = A.emit
    if P.get("CYC"): A.clk = "s_memtime"
    A.only = P.get("ONLY", ["dequant","flags1","g2mfma","g2pub","vb1","flags2","f0","f40","f83","f167","g3mfma","pl2","end"])
    X = P.get("X", 0)
    V1 = P.get("V1", 14)
    V2 = P.get("V2", 21)
    V3 = P.get("V3", 56)
    A("; @launch grid=(256,1,1) block=(256,1,1) lds=163840")
    A('.amdgcn_target "amdgcn-amd-amdhsa--gfx950"'); A(".text")
    A(f".globl {NAME}"); A(".p2align 8"); A(f".type {NAME},@function"); A(f"{NAME}:")
    A("s_cmp_ge_u32 s2, 256"); A("s_cbranch_scc1 L_end")
    if diag:
        A(f"{A.clk} s[66:67]")
    A("s_load_dwordx16 s[4:19], s[0:1], 0")
    A("s_load_dwordx2 s[20:21], s[0:1], 64")
    if (0 if P.get("TM") else P.get("IPF", 3)) == 2:
        A("s_getpc_b64 s[22:23]"); A("L_pc:")
        A("s_and_b32 s57, s2, 0xf8"); A("v_lshrrev_b32 v1, 5, v0"); A("v_add_lshl_u32 v1, v1, s57, 7"); A("v_min_u32 v1, L_codeend-L_pc-4, v1")
        A("global_load_dword a255, v1, s[22:23]")
    A("v_lshrrev_b32 v1, 6, v0"); A("s_and_b32 s56, s2, 7"); A("v_readfirstlane_b32 s3, v1")
    A("v_and_b32 v1, 63, v0"); A("s_lshr_b32 s57, s2, 3")
    A("v_lshlrev_b32 v2, 4, v1"); A("v_and_b32 v3, 15, v1"); A("v_lshrrev_b32 v4, 4, v1")
    A("s_cmp_ge_u32 s57, 28"); A("s_cbranch_scc1 L_g1")
    if P.get("IPF") == 8:
        A("s_cmp_lg_u32 s3, 3"); A("s_cbranch_scc1 L_noipf")
        A(f"s_sub_u32 s61, s57, {P.get('IPJ', 26)}"); A("s_cmp_ge_u32 s61, 2"); A("s_cbranch_scc1 L_noipf")
        A("s_getpc_b64 s[96:97]"); A("L_pc:")
        A("s_lshl_b32 s61, s61, 13"); A("v_lshlrev_b32 v14, 7, v1"); A("v_add_u32 v14, s61, v14"); A("v_add_u32 v15, 0x4000, v14"); A("v_min_u32 v15, L_codeend-L_pc-4, v15")
        A("global_load_dword a255, v15, s[96:97]"); A("global_load_dword a255, v14, s[96:97]")
        A("L_noipf:")
    if P.get("IPF") == 6:
        A("s_getpc_b64 s[96:97]"); A("L_pc:")
        A("s_mul_i32 s61, s3, 28"); A("s_add_u32 s61, s61, s57"); A("s_lshl_b32 s61, s61, 8"); A("s_min_u32 s61, s61, L_codeend-L_pc-132")
        A("s_add_u32 s96, s96, s61"); A("s_addc_u32 s97, s97, 0")
        A("s_load_dword s98, s[96:97], 0"); A("s_load_dword s99, s[96:97], 128")
    if (0 if P.get("TM") else P.get("IPF", 3)) == 3:
        A("s_cmp_lg_u32 s3, 3"); A("s_cbranch_scc1 L_noipf")
        A(f"s_sub_u32 s61, s57, {P.get('IPJ', 6)}"); A(f"s_cmp_ge_u32 s61, {P.get('IPN', 4)}"); A("s_cbranch_scc1 L_noipf")
        A("s_getpc_b64 s[22:23]"); A("L_pc:")
        A("s_lshl_b32 s61, s61, 13"); A("v_lshlrev_b32 v14, 7, v1"); A("v_add_u32 v14, s61, v14"); A("v_min_u32 v14, L_codeend-L_pc-4, v14")
        A("global_load_dword a255, v14, s[22:23]")
        A("L_noipf:")
    A("s_and_b32 s64, s57, 1")
    A("s_lshl_b32 s58, s64, 1"); A("s_bfe_u32 s62, s57, 0x10001"); A("s_add_u32 s58, s58, s62")
    A("s_lshr_b32 s59, s57, 2"); A("s_mul_i32 s61, s56, 7"); A("s_add_u32 s59, s59, s61")
    A("v_lshrrev_b32 v8, 2, v1"); A("v_lshlrev_b32 v8, 11, v8"); A("v_and_b32 v9, 3, v1"); A("v_lshl_add_u32 v8, v9, 7, v8")
    A("v_lshlrev_b32 v9, 11, v1")
    A("v_mul_u32_u24 v5, 57344, v4"); A("v_lshl_add_u32 v5, v3, 4, v5")
    T0 = P.get("T0", 1)
    if P.get("TM"):
        A("s_lshr_b32 s61, s57, 2"); A("s_add_u32 s62, s56, 1"); A("s_and_b32 s62, s62, 3"); A("s_sub_u32 s62, s61, s62")
        A("s_cmp_gt_i32 s62, 0"); A("s_subb_u32 s61, s61, 0"); A("s_cmp_gt_i32 s62, 4"); A("s_subb_u32 s61, s61, 0")
        A("s_lshl_b32 s61, s61, 2"); A("s_and_b32 s63, s57, 3"); A("s_add_u32 s61, s61, s63")
        A("s_lshl_b32 s60, s3, 3"); A("s_add_u32 s63, s63, s60"); A("s_cmp_gt_i32 s62, 0"); A("s_cselect_b32 s60, 0, 4"); A("s_add_u32 s60, s60, 78"); A("s_add_u32 s60, s60, s63")
        A("s_and_b32 s62, s62, 3"); A("s_cselect_b32 s61, s61, 20")
        A("s_mul_i32 s62, s3, 20"); A("s_add_u32 s62, s62, s61"); A("s_cmp_lt_u32 s61, 20"); A("s_cselect_b32 s61, s62, s60"); A("s_cselect_b32 s62, s62, 0")
        A("s_sub_u32 s62, s62, 78"); A("s_cmp_ge_u32 s62, 2"); A("s_cbranch_scc1 L_noipf")
        A("s_mov_b32 s61, 120")
        A("s_getpc_b64 s[22:23]"); A("L_pc:")
        A("s_lshl_b32 s62, s62, 14"); A("v_lshlrev_b32 v14, 7, v1"); A("v_add_u32 v14, s62, v14"); A("v_add_u32 v15, 0x2000, v14"); A("v_min_u32 v15, L_codeend-L_pc-4, v15")
        A("global_load_dword a255, v14, s[22:23]"); A("global_load_dword a255, v15, s[22:23]")
        A("L_noipf:")
    else:
        A("s_mul_i32 s61, s3, 28"); A("s_add_u32 s61, s61, s57")
    A("s_mul_i32 s62, s61, 43"); A("s_lshr_b32 s62, s62, 8")
    A("s_mul_i32 s63, s62, 6"); A("s_sub_u32 s61, s61, s63"); A(f"s_add_u32 s65, s62, {T0}")
    A("s_lshl_b32 s62, s65, 2"); A("s_add_u32 s62, s62, s61"); A("s_lshl_b32 s62, s62, 15"); A("s_lshr_b32 s63, s56, 1"); A("s_lshl_b32 s63, s63, 9"); A("s_add_u32 s62, s62, s63")
    A("s_and_b32 s63, s56, 1"); A("s_lshl_b32 s63, s63, 1"); A("s_add_u32 s63, s63, s61"); A("s_sub_u32 s63, s63, 4"); A("s_lshl_b32 s63, s63, 17")
    A("s_lshl_b32 s60, s65, 7"); A("s_add_u32 s63, s63, s60")
    A("s_cmp_lt_u32 s61, 4"); A("s_cselect_b32 s23, s62, s63"); A("s_cselect_b64 vcc, -1, 0")
    A("v_cndmask_b32 v13, v9, v8, vcc")
    A("s_waitcnt lgkmcnt(0)")
    if diag:
        for i in range(1, 18): A(f"s_mov_b64 s[{66+2*i}:{67+2*i}], s[66:67]")
    A(f"s_cselect_b32 s{SU}, s12, s4"); A(f"s_cselect_b32 s{SU+1}, s13, s5"); A(f"s_mov_b32 s{SU+2}, {256*1024*2}"); A(f"s_cselect_b32 s{SU+2}, {1024*1024*2}, s{SU+2}"); A(f"s_mov_b32 s{SU+3}, 0x20000")
    A("s_mov_b32 s26, s23"); A("s_mov_b32 s27, s65")
    TB = P.get("TB", [10, 16, 16])
    def touch(k):
        if not P.get("TOUCH", 1): return
        lo = 0 if k == 0 else TB[k-1]
        A(f"s_sub_u32 s61, s27, {lo}"); A(f"s_cmp_ge_u32 s61, {TB[k]-lo}"); A(f"s_cbranch_scc1 L_td{k}")
        A(f"buffer_load_dword a255, v13, s[{SU}:{SU+3}], s26 offen")
        A(f"L_td{k}:")
    touch(0)
    if P.get("IPF") == 9:
        A("s_cmp_lg_u32 s3, 3"); A("s_cbranch_scc1 L_noipf")
        A(f"s_sub_u32 s61, s57, {P.get('IPJ', 26)}"); A("s_cmp_ge_u32 s61, 2"); A("s_cbranch_scc1 L_noipf")
        A("s_getpc_b64 s[96:97]"); A("L_pc:")
        A("s_lshl_b32 s61, s61, 13"); A("v_lshlrev_b32 v14, 7, v1"); A("v_add_u32 v14, s61, v14"); A("v_add_u32 v15, 0x4000, v14"); A("v_min_u32 v15, L_codeend-L_pc-4, v15")
        A("global_load_dword a255, v15, s[96:97]"); A("global_load_dword a255, v14, s[96:97]")
        A("L_noipf:")
    if P.get("IPF") == 5:
        A("s_getpc_b64 s[96:97]"); A("L_pc:")
        A("s_mul_i32 s61, s3, 28"); A("s_add_u32 s61, s61, s57"); A("s_lshl_b32 s61, s61, 8"); A("s_min_u32 s61, s61, L_codeend-L_pc-132")
        A("s_add_u32 s96, s96, s61"); A("s_addc_u32 s97, s97, 0")
        A("s_load_dword s98, s[96:97], 0"); A("s_load_dword s99, s[96:97], 128")
    if (0 if P.get("TM") else P.get("IPF", 3)) == 1:
        A("s_cmp_lg_u32 s3, 3"); A("s_cbranch_scc1 L_noipf")
        A(f"s_sub_u32 s61, s57, {P.get('IPJ', 6)}"); A(f"s_cmp_ge_u32 s61, {P.get('IPN', 4)}"); A("s_cbranch_scc1 L_noipf")
        A("s_getpc_b64 s[22:23]"); A("L_pc:")
        A("s_lshl_b32 s61, s61, 13"); A("v_lshlrev_b32 v14, 7, v1"); A("v_add_u32 v14, s61, v14"); A("v_min_u32 v14, L_codeend-L_pc-4, v14")
        A("global_load_dword a255, v14, s[22:23]")
        A("L_noipf:")
    A("s_lshl_b32 s61, s64, 7"); A(f"s_add_u32 s61, s61, {EP_OFF}"); A("s_add_u32 s22, s20, s61"); A("s_addc_u32 s23, s21, 0")
    A("s_load_dword s60, s[22:23], 0")
    srd(A, SQ, 6, 1024*3584*4); srd(A, SS, 8, 16*3584*2); srd(A, SZ, 10, 16*3584*2)
    A(f"s_mul_i32 s7, s3, {256*14336}"); A("s_lshl_b32 s62, s59, 8"); A("s_add_u32 s7, s7, s62")
    A(f"s_mul_i32 s8, s3, {4*7168}"); A("s_lshl_b32 s62, s59, 7"); A("s_add_u32 s8, s8, s62")
    QC = P.get("QC", 2)
    def gpos(i): return (i >> 1, i & 1) if QC == 2 else (i & 3, i >> 2)
    RQ = 160
    def scload():
        A("v_lshlrev_b32 v7, 3, v3")
        for gi in range(4):
            A(f"s_add_u32 s61, s58, {gi}"); A("s_and_b32 s61, s61, 3"); A("s_mul_i32 s61, s61, 7168"); A("s_add_u32 s62, s8, s61")
            A.vmem(f"buffer_load_dwordx2 v[{144+4*gi}:{145+4*gi}], v7, s[{SS}:{SS+3}], s62 offen", "q0")
            A.vmem(f"buffer_load_dwordx2 v[{146+4*gi}:{147+4*gi}], v7, s[{SZ}:{SZ+3}], s62 offen", "q0")
    def qload(s):
        gp, sub = gpos(s)
        A(f"s_add_u32 s61, s58, {gp}"); A("s_and_b32 s61, s61, 3"); A(f"s_mul_i32 s61, s61, {64*14336}"); A("s_add_u32 s61, s61, s7")
        for i in range(8):
            row = 32*sub + 16*(i>>2) + (i&3); r = RQ + 32*(s%3) + 4*i
            A(f"s_add_u32 s62, s61, {row*14336}")
            if P.get("QD", 5) and s < P.get("QDN", 2): A.wait_n(P.get("QD", 5) - 1)
            A.vmem(f"buffer_load_dwordx4 v[{r}:{r+3}], v5, s[{SQ}:{SQ+3}], s62 offen", f"q{s}")
    if P.get("MW", 0):
        A("s_waitcnt vmcnt(0)")
        if P.get("MW", 0) > 1: A(f"s_sleep {P['MW']}")
    if P.get("MS", 0): A(f"s_sleep {P['MS']}")
    A.stamp("t1")
    if P.get("QD", 5): scload(); A.vm = []
    qload(0); touch(1)
    if P.get("IPF") == 4:
        A("s_cmp_lg_u32 s3, 3"); A("s_cbranch_scc1 L_noipf")
        A(f"s_sub_u32 s61, s57, {P.get('IPJ', 6)}"); A(f"s_cmp_ge_u32 s61, {P.get('IPN', 4)}"); A("s_cbranch_scc1 L_noipf")
        A("s_getpc_b64 s[96:97]"); A("L_pc:")
        A("s_lshl_b32 s61, s61, 13"); A("v_lshlrev_b32 v14, 7, v1"); A("v_add_u32 v14, s61, v14"); A("v_min_u32 v14, L_codeend-L_pc-4, v14")
        A("global_load_dword a255, v14, s[96:97]")
        A("L_noipf:")
    if not P.get("QD", 5): scload()
    srd(A, SV, 14, 3584*3584*2); srd(A, SO, 16, 256*3584*2); srd(A, SW, 20, 0x10000000)
    A("s_lshr_b32 s9, s56, 1"); A("s_and_b32 s61, s56, 1"); A("s_mul_i32 s11, s61, 14"); A("s_lshr_b32 s61, s57, 1"); A("s_add_u32 s11, s11, s61")
    A("s_mul_i32 s65, s64, 28"); A("s_add_u32 s65, s65, s11")
    A("s_lshl_b32 s12, s65, 18"); A("s_lshl_b32 s61, s9, 14"); A("s_add_u32 s12, s12, s61"); A("s_lshl_b32 s61, s3, 12"); A("s_add_u32 s12, s12, s61")
    A(f"s_add_u32 s12, s12, {PART_OFF}")
    qload(1); touch(2)
    A("v_lshlrev_b32 v6, 2, v4"); A("v_xor_b32 v6, v6, v3"); A("v_lshlrev_b32 v6, 4, v6"); A("v_mul_u32_u24 v8, 7168, v4"); A("v_add_u32 v6, v6, v8")
    A("s_mul_i32 s14, s9, 896"); A("s_lshl_b32 s61, s3, 2"); A("s_add_u32 s14, s14, s61"); A("s_mul_i32 s14, s14, 7168")
    A("s_lshl_b32 s61, s11, 8"); A("s_add_u32 s14, s14, s61")
    A(f"s_mul_i32 s61, s64, {7*16*7168}"); A("s_sub_u32 s15, s14, s61"); A("s_add_u32 s14, s14, s61")
    A("s_lshl_b32 s18, s3, 10")
    A(f"s_mul_i32 s61, s64, {7*4096}"); A("s_add_u32 s16, s18, s61"); A("s_sub_u32 s17, s18, s61")
    def vdma_ops(n):
        odd = (n // 7) & 1
        return [f"s_add_u32 m0, s{16+odd}, {(n % 28)*4096}", f"s_add_u32 s62, s{14+odd}, {n*16*7168}",
                (f"buffer_load_dwordx4 v6, s[{SV}:{SV+3}], s62 offen lds", f"V{n//14}")]
    xb = [24, 25, 26, 27, 40, 41, 42, 43]
    A("s_lshl_b32 s19, s58, 5"); A("s_lshl_b32 s61, s3, 3"); A("s_add_u32 s19, s19, s61"); A("s_lshl_b32 s19, s19, 12")
    for i in range(8):
        gp, sub = gpos(i)
        A(f"s_add_u32 s61, s58, {gp}"); A("s_and_b32 s61, s61, 3"); A("s_lshl_b32 s61, s61, 13"); A("s_add_u32 s61, s61, s19"); A(f"s_add_u32 s{xb[i]}, s61, {sub*4096 + XR_OFF}")
    A("s_lshr_b32 s10, s57, 2"); A("s_add_u32 s10, s10, s3"); A("s_and_b32 s10, s10, 3")
    FP1 = P.get("FP1", 7)
    A("v_and_b32 v0, 3, v1"); A(f"v_lshlrev_b32 v0, {FP1}, v0")
    A("s_lshl_b32 s61, s64, 2"); A("s_add_u32 s61, s61, s3"); A(f"s_lshl_b32 s61, s61, {FP1+2}"); A(f"s_add_u32 s20, s61, {F1_OFF}")
    REP = P.get("REP", 1)
    A("s_lshl_b32 s61, s56, 12"); A("s_add_u32 s20, s20, s61")
    A("s_waitcnt lgkmcnt(0)"); A(f"s_add_u32 s60, s60, {TAGC}")
    def dq_ops(s):
        o = []
        if QC == 1 or s % 2 == 0:
            r = 144 + 4*gpos(s)[0]
            o += [f"v_lshlrev_b32 v8, 16, v{r}", f"v_and_b32 v9, 0xffff0000, v{r}", f"v_lshlrev_b32 v10, 16, v{r+1}", f"v_and_b32 v11, 0xffff0000, v{r+1}",
                  f"v_lshlrev_b32 v12, 16, v{r+2}", f"v_and_b32 v13, 0xffff0000, v{r+2}", f"v_lshlrev_b32 v14, 16, v{r+3}", f"v_and_b32 v15, 0xffff0000, v{r+3}"]
            o += [f"v_mul_f32 v{12+t}, -v{12+t}, v{8+t}" for t in range(4)]
        q = RQ + 32*(s%3); b = 16 + 16*s
        o += [f"v_cvt_f32_i32 v{q+e}, v{q+e}" for e in range(32)]
        o.append(".p2align 3")
        for i in range(8):
            for h2 in range(2):
                r = q + 4*i + 2*h2
                o.append(f"v_pk_fma_f32 v[{r}:{r+1}], v[{r}:{r+1}], v[{8+2*h2}:{9+2*h2}], v[{12+2*h2}:{13+2*h2}]")
        for t in range(4):
            for jj in range(4):
                o.append(f"v_cvt_pk_bf16_f32 v{b+4*t+jj}, v{q+8*jj+t}, v{q+8*jj+4+t}")
        return o
    def vread_ops(ks):
        base = (ks % 28)*4096; vr = 146 + base//65536; off = base % 65536
        return [f"ds_read_b64_tr_b16 a[{4*ks}:{4*ks+1}], v{vr} offset:{off}", f"ds_read_b64_tr_b16 a[{4*ks+2}:{4*ks+3}], v{vr} offset:{off+1024}"]
    pb = [4, 5, 7, 8]
    XA = 112
    DF = P.get("DF", 1); FP = P.get("FP", 2)
    def mid(c, VL, V1, V2, V2AT, V2P):
        nv = 0
        if VL:
            while nv < min(VL, 6): emit(vdma_ops(nv)); nv += 1
            A.wait_tag("q0"); emit(dq_ops(0)); A.stamp("dq0")
            A.wait_tag("q1")
            while nv < min(VL, 10): emit(vdma_ops(nv)); nv += 1
            emit(dq_ops(1)); A.stamp("dq1")
            while nv < VL: emit(vdma_ops(nv)); nv += 1
            qload(2); qload(3); qload(4); s0 = 2
        else:
            qload(2); s0 = 0
        for s in range(s0, 8):
            A.wait_tag(f"q{s}")
            dqo = dq_ops(s)
            if s == 7 and P.get("EP", -1) >= 0: dqo.insert(P["EP"], (f"buffer_load_dword v7, v0, {WS}, s20 offen sc1", "ep"))
            EPV = P.get("EPV", 0)
            if s == 7 and EPV:
                pos = P["EP"] + 1
                for i_ in range(EPV):
                    pos += P.get("EPG", 4); dqo[pos:pos] = vdma_ops(nv); pos += 3; nv += 1
                assert nv == V1
            emit(dqo)
            if s + 3 < 8: qload(s+3)
            else:
                tgt = V1 if s == 7 else min(V1 - EPV, VL + P.get("VS", 5)*(s-4))
                while nv < tgt: emit(vdma_ops(nv)); nv += 1
            A.stamp(f"dq{s}")
            if s == P.get("PTX", -1):
                A("s_mov_b32 s62, 0x90000"); A.vmem(f"buffer_load_dword a255, off, {WS}, s62 sc1", "pt")
                A("s_mov_b32 s62, 0x390000"); A.vmem(f"buffer_load_dword a255, off, {WS}, s62 sc1", "pt")
        for rp in range(4):
            A(f"s_add_u32 s62, s10, {rp}"); A("s_and_b32 s62, s62, 3"); A("s_lshl_b32 s62, s62, 10"); A(f"v_add_u32 v{8+rp}, s62, v2")
        for rp in range(1, 4):
            A(f"s_add_u32 s62, s3, {rp}"); A("s_and_b32 s62, s62, 3"); A("s_mul_i32 s62, s62, 12288"); A(f"s_add_u32 s62, s62, {0x1c000 + (rp-1)*4096}")
            A(f"v_add_u32 v{12+rp}, s62, v2")
        A("s_mul_i32 s62, s3, 12288"); A(f"s_add_u32 s62, s62, {0x1c000}"); A("v_add_u32 v12, s62, v2")
        A("v_lshlrev_b32 v144, 10, v4"); A("v_lshl_add_u32 v144, v3, 4, v144")
        A("s_lshl_b32 s61, s58, 1"); A("s_lshr_b32 s62, s10, 1"); A("s_add_u32 s61, s61, s62"); A("s_mul_i32 s61, s61, 224")
        A("s_lshl_b32 s62, s59, 2"); A("s_add_u32 s61, s61, s62"); A("s_lshl_b32 s61, s61, 10")
        A("s_and_b32 s62, s10, 1"); A("s_lshl_b32 s62, s62, 8"); A("s_add_u32 s61, s61, s62"); A(f"s_add_u32 s23, s61, {H_OFF}")
        A("s_lshl_b32 s19, s64, 2"); A("s_add_u32 s19, s19, s9"); A("s_lshl_b32 s19, s19, 12"); A(f"s_add_u32 s19, s19, {F2_OFF}")
        A("s_mul_i32 s61, s9, 14"); A("s_sub_u32 s61, s59, s61"); A("s_lshl_b32 s61, s61, 1"); A("s_and_b32 s62, s58, 1"); A("s_add_u32 s61, s61, s62")
        A(f"s_lshl_b32 s61, s61, {FP}"); A("s_add_u32 s21, s61, s19")
        A("v_lshrrev_b32 v146, 5, v1"); A("v_lshlrev_b32 v146, 11, v146"); A("v_bfe_u32 v147, v1, 2, 2"); A("v_lshl_add_u32 v146, v147, 8, v146")
        A("v_xor_b32 v147, s3, v147"); A("v_lshl_add_u32 v146, v147, 6, v146"); A("v_bfe_u32 v147, v1, 4, 1"); A("v_lshl_add_u32 v146, v147, 5, v146")
        A("v_and_b32 v147, 3, v1"); A("v_lshl_add_u32 v146, v147, 3, v146")
        A("v_add_u32 v147, 0x10000, v146")
        if DF:
            A("v_min_u32 v145, 27, v1"); A(f"v_lshlrev_b32 v145, {FP}, v145"); A(f"v_xor_b32 v148, {1<<FP}, v145"); A("v_cmp_eq_u32 vcc, s61, v145"); A("s_and_b32 s61, s56, 1"); A("s_lshl_b32 s61, s61, 15")
            A("v_cndmask_b32 v145, v145, v148, vcc"); A("s_add_u32 s19, s19, s61")
        A.stamp("dequant")
        if EPV:
            kp = A.vm[-EPV:]
            A(f"s_waitcnt vmcnt({EPV})"); A("v_cmp_ne_u32 vcc, s60, v7"); A(f"s_cbranch_vccz L_poll1{c}_x")
            poll(A, f"L_poll1{c}", "v0", "s20"); A.vm = kp
        else: poll(A, f"L_poll1{c}", "v0", "s20", pre=P.get("EP", -1) >= 0)
        A.stamp("flags1")
        order = [(rt, s) for rt in (1, 2, 3, 0) for s in range(8)]
        aq = [(f"buffer_load_dwordx4 a[{XA+16*s+4*rt}:{XA+16*s+4*rt+3}], v{8+rt}, {WS}, s{xb[s]} offen {P.get('XF','sc1')}", f"a{rt}_{s}") for rt, s in order]
        for i in range(P.get("NA0", 12)): emit([aq.pop(0)])
        A("v_mov_b32 v0, 0"); A("v_mov_b32 v7, s60")
        vr_next = 0; vfree = 0
        if V2 > 28:
            assert nv == 28
            A("s_barrier")
            for ks in range(28): emit(vread_ops(ks))
            vr_next = 28
        wq = []; delay = 0; nm = 0
        for idx, (rt, s) in enumerate(order):
            A.wait_tag(f"a{rt}_{s}")
            A.stamp(f"i{idx}")
            if vr_next and idx == 8:
                A("s_waitcnt lgkmcnt(0)"); A("s_barrier"); vfree = 28
            if (rt, s) == (0, P.get("B2AT", 4)):
                while wq: A(wq.pop(0))
                A("s_waitcnt lgkmcnt(0)"); A("s_barrier")
                A.stamp("b2")
                wq = [f"ds_read_b128 v[{160+4*i}:{163+4*i}], v12 offset:{i*1024}" for i in range(12)]
            for t in range(4):
                d = 208 + 4*t if rt == 0 else 160 + ((rt-1)*4+t)*4
                acc = f"v[{d}:{d+3}]"
                c_ = "0" if s == 0 else acc
                A(f"v_mfma_f32_16x16x32_bf16 {acc}, v[{16+16*s+4*t}:{19+16*s+4*t}], a[{XA+16*s+4*rt}:{XA+16*s+4*rt+3}], {c_}")
                nm += 1
                if wq and delay <= 0: A(wq.pop(0))
                delay -= 1
                if t in (1, 3) and aq: emit([aq.pop(0)])
                elif nv < V2 and idx >= V2AT and nm % V2P == 2: emit(vdma_ops(nv)); nv += 1
            if s == 7 and rt != 0:
                wq += [f"ds_write_b128 v{12+rt}, v[{160+((rt-1)*4+t)*4}:{163+((rt-1)*4+t)*4}] offset:{t*1024}" for t in range(4)]
                delay = 8
        while wq: A(wq.pop(0))
        A.stamp("g2mfma")
        A("s_waitcnt lgkmcnt(0)")
        A(".p2align 3")
        for o in (176, 192, 208):
            for e in range(0, 16, 2): A(f"v_pk_add_f32 v[{160+e}:{161+e}], v[{160+e}:{161+e}], v[{o+e}:{o+e+1}]")
        for r in range(4):
            for h2 in range(2):
                A(f"v_cvt_pk_bf16_f32 v{224+2*r+h2}, v{160+4*(2*h2)+r}, v{160+4*(2*h2+1)+r}")
        A.vmem(f"buffer_store_dwordx4 v[224:227], v144, {WS}, s23 offen sc1", "hst")
        A.vmem(f"buffer_store_dwordx4 v[228:231], v144, {WS}, s23 offen offset:512 sc1", "hst")
        landed = (min(nv, 28) // 14) * 14
        A.wait_tag("hst")
        A("s_barrier")
        A("s_cmp_lg_u32 s3, 0"); A(f"s_cbranch_scc1 L_f2done{c}")
        A("v_lshlrev_b32 v8, 15, v1"); A("s_mov_b64 exec, 3"); A(f"buffer_store_dword v7, v8, {WS}, s21 offen sc1"); A("s_mov_b64 exec, -1")
        A(f"L_f2done{c}:")
        A.stamp("g2pub")
        if DF:
            assert vr_next == 0 and landed == 14 and V3 == 28
            if P.get("PRE2", 1):
                A("s_cmp_lg_u32 s3, 3"); A("s_cbranch_scc1 L_nopre2"); A(f"buffer_load_dword v14, v145, {WS}, s19 offen sc1"); A("L_nopre2:")
            npost = 28 - nv
            while nv < 28: emit(vdma_ops(nv)); nv += 1
            for ks in range(14): emit(vread_ops(ks))
            return npost
        while nv < min(V3, 28 + vfree): emit(vdma_ops(nv)); nv += 1
        for ks in range(vr_next, landed): emit(vread_ops(ks))
        vr_next = max(vr_next, landed)
        while vr_next < 28 or (vfree < 28 and nv < V3):
            if vr_next == vfree:
                A.wait_tag(f"V{vr_next//14}"); A("s_barrier")
                for ks in range(vr_next, vr_next + 14): emit(vread_ops(ks))
                vr_next += 14
            if nv < V3:
                A("s_waitcnt lgkmcnt(0)"); A("s_barrier"); vfree = vr_next
                while nv < min(V3, 28 + vfree): emit(vdma_ops(nv)); nv += 1
            else: vfree = vr_next
        assert nv == V3 and vr_next == 28
    vm0 = list(A.vm); st0 = list(A.stnames)
    if P.get("CL"): A("s_bitcmp1_b32 s57, 1"); A("s_cbranch_scc1 L_late")
    npost = mid("E", *P.get("CE", [0, 14, 21, 16, 4]))
    vmE = list(A.vm)
    if P.get("CL"):
        A("s_branch L_fjoin")
        A("L_late:")
        A.vm = list(vm0); A.stnames = list(st0)
        mid("L", *P["CL"])
        A("L_fjoin:")
    lo, sh = (vmE, A.vm) if len(vmE) >= len(A.vm) else (A.vm, vmE)
    assert lo[len(lo)-len(sh):] == sh
    A.vm = list(lo); nv = V3; vr_next = vis = 14 if DF else 28; vfree1 = not DF
    A("s_add_u32 s10, s9, s11"); A("s_and_b32 s10, s10, 3")
    for p in range(4):
        A(f"s_add_u32 s61, s10, {p+1}"); A("s_and_b32 s61, s61, 3"); A("s_lshl_b32 s62, s64, 2"); A("s_add_u32 s61, s61, s62")
        A("s_mul_i32 s61, s61, 224"); A("s_mul_i32 s62, s9, 56"); A("s_add_u32 s61, s61, s62"); A("s_add_u32 s61, s61, s3")
        A(f"s_lshl_b32 s61, s61, 10"); A(f"s_add_u32 s{pb[p]}, s61, {H_OFF}")
    A("v_add_u32 v13, 0x10000, v2"); A("v_add_u32 v15, 0x20000, v2")
    A("s_lshl_b32 s20, s65, 18"); A("s_lshl_b32 s61, s9, 16"); A("s_add_u32 s20, s20, s61"); A("s_lshl_b32 s61, s3, 12"); A("s_add_u32 s20, s20, s61")
    A(f"s_add_u32 s20, s20, {PART_OFF}")
    A("v_min_u32 v12, 27, v1"); A(f"v_lshlrev_b32 v12, {FP}, v12")
    A("v_and_b32 v9, 31, v1"); A("v_mul_u32_u24 v9, 7168, v9"); A("v_lshrrev_b32 v10, 5, v1"); A("v_lshl_add_u32 v9, v10, 4, v9")
    A("s_lshl_b32 s61, s64, 2"); A("s_add_u32 s61, s61, s10"); A(f"s_mul_i32 s61, s61, {32*7168}")
    A("s_lshl_b32 s62, s11, 8"); A("s_add_u32 s61, s61, s62"); A("s_lshl_b32 s62, s3, 6"); A("s_add_u32 s23, s61, s62")
    A("v_and_b32 v8, 3, v1"); A("v_mul_u32_u24 v8, 0x14000, v8"); A("s_lshl_b32 s21, s65, 18"); A(f"s_add_u32 s21, s21, {PART_OFF}")
    for k in range(3):
        if P.get("SELF"):
            A(f"s_add_u32 s61, s9, {k+1}"); A("s_and_b32 s61, s61, 3"); A("s_lshl_b32 s61, s61, 16"); A(f"s_add_u32 s{24+k}, s61, s12"); A(f"s_xor_b32 s{24+k}, s{24+k}, 0x40000")
        else:
            A(f"s_add_u32 s61, s9, {3-k}"); A("s_and_b32 s61, s61, 3"); A("s_lshl_b32 s61, s61, 14"); A(f"s_add_u32 s{24+k}, s61, s20")
    A("s_waitcnt lgkmcnt(0)")
    A.stamp("vb1")
    if not DF: A("s_and_b32 s61, s56, 1"); A("s_lshl_b32 s61, s61, 15"); A("s_add_u32 s19, s19, s61")
    if P.get("ONEP", 1):
        A("s_cmp_lg_u32 s3, 3"); A("s_cbranch_scc1 L_poll2_x")
        keep = list(A.vm)
        if DF and P.get("PRE2", 1):
            A(f"s_waitcnt vmcnt({npost})"); A("v_cmp_ne_u32 vcc, s60, v14"); A("s_cbranch_vccz L_poll2_x")
        poll(A, "L_poll2", "v145" if DF else "v12", "s19", "v14", slp=P.get("SLP", 0))
        A.vm = keep
        A("s_barrier")
    else: poll(A, "L_poll2", "v12", "s19", "v14", slp=P.get("SLP", 0))
    A.stamp("flags2")
    A("v_mul_u32_u24 v12, 37, v1"); A("v_add_u32 v12, s60, v12"); A("v_and_b32 v12, 0xff, v12"); A("s_mov_b32 s27, 0xffffff00")
    groups = []
    for kb in range(X//4):
        for p in range(3): groups.append((p, 4*kb))
    for p in range(3):
        for kb in range(X//4, 14): groups.append((p, 4*kb))
    for kb in range(14): groups.append((3, 4*kb))
    frags = [(p, k0+i) for (p, k0) in groups for i in range(4)]
    NG = len(groups); NFR = len(frags)
    SGG = P.get("SGG", 2); AH = P.get("AH", 8); AH0 = P.get("AH0", 6); AH2 = P.get("AH2", 16); LA = P.get("LA", 4)
    free = list(range(28, 40)); slot = {}
    def hdma_ops(g):
        p, k0 = groups[g]; slot[g] = free.pop(0)
        return [f"s_add_u32 m0, s18, {slot[g]*4096}", f"s_add_u32 s62, s{pb[p]}, {k0*1024}",
                (f"buffer_load_dwordx4 v2, {WS}, s62 offen {P.get('HF','sc1')} lds", f"h{g}")]
    lg = []
    def ds(s_, tag): A(s_); lg.append(tag)
    def lwait(tag):
        idx = [i for i, t in enumerate(lg) if t == tag]
        if idx:
            n = min(len(lg) - 1 - idx[-1], 15)
            A(f"s_waitcnt lgkmcnt({n})"); del lg[:len(lg)-n]
    hnext = 0
    for g in range(AH0): emit(hdma_ops(g)); hnext += 1
    for _ in range(P.get("VP", 0)): emit(vdma_ops(nv)); nv += 1
    side = []; ready = -1; released = -1
    vrel = set()
    last_of_pass = {}
    for i, (p, ks) in enumerate(frags): last_of_pass[p] = i
    needf = {b: min(i for i, (p_, k_) in enumerate(frags) if k_ >= 14*b) for b in (1, 2, 3)}
    nread = 0
    VRATE = P.get("VRATE", 2)
    S0 = P.get("S0", 2); CF = P.get("CF", 64); PE = P.get("PE", 100); PW = P.get("PW", 12)
    PLS = P.get("PLS", [140, 184, 204])
    srcb = [24, 25, 26]; vq_ = []; PSTF = P.get("PSTF", "sc1")
    def pload(k):
        return [[(f"buffer_load_dwordx4 v[{192+16*k+4*qd}:{195+16*k+4*qd}], v2, {WS}, s{srcb[k]} offen offset:{qd*1024} sc1", f"pl{k}")] for qd in range(4)]
    for f, (p, ks) in enumerate(frags):
        while nread < min(NFR, f + 1 + LA):
            g = nread // 4
            if g > ready:
                tgt = min(NG - 1, g + SGG - 1)
                while hnext <= tgt: emit(hdma_ops(hnext)); hnext += 1
                A.wait_tag(f"h{tgt}")
                for b in (1, 2, 3):
                    if nv >= 14*(b+1) and f >= needf[b] - P.get("WM", 14): A.wait_tag(f"V{b}")
                A("s_barrier")
                ready = tgt
                while released < f // 4 - 1:
                    released += 1; free.append(slot[released])
                for b in (1, 2, 3):
                    if nv >= 14*(b+1) and f"V{b}" not in A.vm: vis = max(vis, 14*(b+1))
                    if b not in vrel and vr_next >= 14*(b+1) and not any(t == f"W{k}" for t in lg for k in range(14*b, 14*b+14)):
                        vrel.add(b)
                        if b == 1: vfree1 = True
                        else: free.extend(range(14*(b-2), 14*(b-2)+14))
            r = 96 + 4*(nread % 8); base = slot[g]*4096 + (nread % 4)*1024
            ds(f"ds_read_b128 v[{r}:{r+3}], v{[2,13,15][base//65536]} offset:{base % 65536}", f"A{nread}")
            nread += 1
        while vr_next <= ks:
            assert vr_next < vis, (f, ks, vr_next, vis)
            for o in vread_ops(vr_next): ds(o, f"W{vr_next}")
            vr_next += 1
        lwait(f"W{ks}")
        lwait(f"A{f}")
        d = 16 + 16*p; r = 96 + 4*(f % 8)
        c = "0" if ks == 0 else f"v[{d}:{d+15}]"
        A(f"v_mfma_f32_32x32x16_bf16 v[{d}:{d+15}], a[{4*ks}:{4*ks+3}], v[{r}:{r+3}], {c}")
        if A.stamp(f"f{f}"): lg.clear()
        did = False
        ah = AH2 if nv == 56 else AH
        if P.get("HR"): ah = AH2 if (f % P["HR"] == 1 and f >= P.get("HR0", 0)) else P.get("AHL", AH)
        hok = hnext < NG and hnext <= ready + ah and free
        VW = [[P["VS3"][0]+P["VS3"][1]*i_, 1] for i_ in range(56-V3)] if P.get("VS3") else P.get("VW")
        if VW and nv < 56 and any(a_ <= f < a_ + n_ for a_, n_ in VW):
            assert nv < 42 or vfree1, f
            emit(vdma_ops(nv)); nv += 1; did = True
        if not did and side and (f % 2 == 0 or not hok or P.get("FS", 1)):
            emit(side.pop(0)); did = True
        if not did and hok:
            emit(hdma_ops(hnext)); hnext += 1; did = True
        if not did and not VW and nv < 56 and f % VRATE == 0:
            emit(vdma_ops(nv)); nv += 1; did = True
        FS = P.get("FS", 1); o1, o2, o3 = (2, 3, 1) if FS else (4, 7, 2)
        for _ in range(4 if FS else 2):
            if vq_: A(vq_.pop(0))
        if vr_next < vis:
            for o in vread_ops(vr_next): ds(o, f"W{vr_next}")
            vr_next += 1
        for pp in range(3):
            dd = 16 + 16*pp
            if f == last_of_pass[pp] + o1:
                vq_ += [f"v_and_or_b32 v{dd+e}, v{dd+e}, s27, v12" for e in range(16)]
            if f == last_of_pass[pp] + o2:
                side.append([f"s_add_u32 s61, s9, {pp+1}", "s_and_b32 s61, s61, 3", "s_lshl_b32 s61, s61, 16", "s_add_u32 s22, s61, s12",
                             (f"buffer_store_dwordx4 v[{dd}:{dd+3}], v2, {WS}, s22 offen {PSTF}", f"pst{pp}")])
            for qd in range(1, 4):
                if f == last_of_pass[pp] + o2 + o3*qd:
                    side.append([(f"buffer_store_dwordx4 v[{dd+4*qd}:{dd+4*qd+3}], v2, {WS}, s22 offen offset:{qd*1024} {PSTF}", f"pst{pp}")])
        for k in range(3):
            if f == PLS[k]: side.extend(pload(k))
        if f == P.get("PTP", -1): side.append([(f"buffer_load_dword a255, v8, {WS}, s21 offen sc1", "pt")])
        if f == P.get("PTO", -1): side.append(["s_mov_b64 exec, 0x1010101", (f"buffer_load_dword a255, v9, s[{SO}:{SO+3}], s23 offen", "pt"), "s_mov_b64 exec, -1"])
    while side: emit(side.pop(0))
    assert nv == 56 and vr_next == 56 and hnext == NG
    A.stamp("g3mfma")
    for k in range(3):
        A(f"s_mov_b32 s63, {2000 if P.get('SELF') else 100000}")
        b = 192 + 16*k
        A.wait_tag(f"pl{k}")
        A(f"L_chk{k}:")
        for e in range(16): A(f"v_xor_b32 v{176+e}, v{b+e}, v12")
        A("v_or3_b32 v10, v176, v177, v178"); A("v_or3_b32 v11, v179, v180, v181")
        for e in range(182, 190, 4):
            A(f"v_or3_b32 v10, v10, v{e}, v{e+1}"); A(f"v_or3_b32 v11, v11, v{e+2}, v{e+3}")
        A("v_or3_b32 v10, v10, v190, v191"); A("v_or_b32 v10, v10, v11"); A("v_and_b32 v10, 0xff, v10")
        A("v_cmp_ne_u32 vcc, 0, v10")
        A(f"s_cbranch_vccz L_chk{k}_x")
        A("s_sub_u32 s63, s63, 1"); A(f"s_cbranch_scc1 L_chk{k}_x")
        for qd in range(4): A(f"buffer_load_dwordx4 v[{b+4*qd}:{b+4*qd+3}], v2, {WS}, s{24+k} offen offset:{qd*1024} sc1")
        A("s_waitcnt vmcnt(0)")
        A(f"s_branch L_chk{k}")
        A(f"L_chk{k}_x:")
        A.stamp(f"pl{k}")
        A(".p2align 3")
        for e in range(0, 16, 2): A(f"v_pk_add_f32 v[{64+e}:{65+e}], v[{64+e}:{65+e}], v[{176+e}:{177+e}]")
    for e in range(8): A(f"v_cvt_pk_bf16_f32 v{96+e}, v{64+2*e}, v{65+2*e}")
    A("s_nop 1")
    A("v_permlane32_swap_b32 v96, v98"); A("v_permlane32_swap_b32 v97, v99")
    A("v_permlane32_swap_b32 v100, v102"); A("v_permlane32_swap_b32 v101, v103")
    A(f"buffer_store_dwordx4 v[96:99], v9, s[{SO}:{SO+3}], s23 offen {P.get('OST','')}")
    A(f"buffer_store_dwordx4 v[100:103], v9, s[{SO}:{SO+3}], s23 offen offset:32 {P.get('OST','')}")
    A("s_lshr_b32 s61, s57, 1"); A("s_or_b32 s61, s61, s56"); A("s_or_b32 s61, s61, s3"); A("s_cmp_lg_u32 s61, 0"); A("s_cbranch_scc1 L_noep")
    A("s_lshl_b32 s61, s64, 7"); A(f"s_add_u32 s61, s61, {EP_OFF}")
    emit(flag_ops("s61", "v0", "v7", "x"))
    A("L_noep:")
    if diag: A("s_waitcnt vmcnt(0)")
    A.stamp("end")
    A("s_branch L_fin")
    A("L_g1:")
    A.vm = []
    A("s_and_b32 s64, s56, 1")
    A("s_lshr_b32 s59, s56, 1"); A("s_lshl_b32 s59, s59, 2"); A("s_add_u32 s59, s59, s57"); A("s_sub_u32 s59, s59, 28")
    A("v_lshrrev_b32 v11, 3, v1"); A("v_and_b32 v12, 7, v1"); A("v_and_b32 v13, 2, v11"); A("v_xor_b32 v13, v12, v13")
    A("v_lshlrev_b32 v14, 11, v11"); A("v_lshl_add_u32 v9, v13, 4, v14"); A("v_xor_b32 v10, 64, v9")
    A("v_lshrrev_b32 v13, 1, v11"); A("v_xor_b32 v13, v12, v13"); A("v_lshl_add_u32 v8, v13, 4, v14"); A("v_xor_b32 v11, 64, v8")
    A("s_lshl_b32 s58, s3, 15"); A("s_lshl_b32 s62, s59, 7"); A("s_add_u32 s58, s58, s62")
    A("s_lshl_b32 s65, s64, 2"); A("s_add_u32 s65, s65, s3"); A("s_lshl_b32 s65, s65, 16")
    A("s_waitcnt lgkmcnt(0)")
    if diag:
        for i in range(1, 18): A(f"s_mov_b64 s[{66+2*i}:{67+2*i}], s[66:67]")
    srd(A, SX, 4, 256*1024*2); srd(A, SU, 12, 1024*1024*2)
    A("s_lshl_b32 s4, s3, 11"); A("s_lshl_b32 s5, s3, 12"); A("s_add_u32 s5, s5, 8192")
    NS = 6; STG = 24576; G1D = P.get("G1D", 3)
    def g1_ops(st):
        o = []
        for i in range(2):
            o.append([f"s_add_u32 m0, s4, {(st % NS)*STG + i*1024}", f"s_add_u32 s62, s58, {st*64*2048 + i*8*2048}",
                      (f"buffer_load_dwordx4 v{9+i}, s[{SU}:{SU+3}], s62 offen lds", f"g{st}")])
        for i in range(4):
            o.append([f"s_add_u32 m0, s5, {(st % NS)*STG + i*1024}", f"s_add_u32 s62, s65, {st*128 + i*8*2048}",
                      (f"buffer_load_dwordx4 v{[8,11][i&1]}, s[{SX}:{SX+3}], s62 offen lds", f"g{st}")])
        return o
    for st in range(G1D):
        for o in g1_ops(st): emit(o)
    A("s_lshl_b32 s61, s64, 7"); A(f"s_add_u32 s61, s61, {EP_OFF}"); A("s_add_u32 s22, s20, s61"); A("s_addc_u32 s23, s21, 0")
    A("s_load_dword s60, s[22:23], 0")
    srd(A, SV, 14, 3584*3584*2); srd(A, SW, 20, 0x10000000)
    A("v_lshrrev_b32 v50, 2, v3"); A("v_and_b32 v51, 3, v3"); A("v_lshlrev_b32 v52, 10, v4")
    A("v_lshl_add_u32 v52, v50, 7, v52"); A("v_lshl_add_u32 v52, v51, 3, v52")
    A("v_lshrrev_b32 v53, 1, v50"); A("v_and_b32 v51, 1, v4"); A("v_lshl_add_u32 v53, v51, 1, v53"); A("v_lshlrev_b32 v53, 5, v53")
    for t in range(4):
        A(f"v_xor_b32 v{16+3*t}, {32*t}, v53"); A(f"v_add_u32 v{16+3*t}, v{16+3*t}, v52")
        A(f"v_add_u32 v{17+3*t}, {2*STG}, v{16+3*t}"); A(f"v_add_u32 v{18+3*t}, {4*STG}, v{16+3*t}")
    A("v_lshrrev_b32 v50, 1, v3"); A("v_xor_b32 v50, v50, v4"); A("v_lshlrev_b32 v50, 4, v50"); A("v_lshl_add_u32 v50, v3, 7, v50")
    A("v_add_u32 v28, s5, v50"); A("v_xor_b32 v50, 64, v50"); A("v_add_u32 v31, s5, v50")
    for par in range(2):
        A(f"v_add_u32 v{29+3*par}, {2*STG}, v{28+3*par}"); A(f"v_add_u32 v{30+3*par}, {4*STG}, v{28+3*par}")
    A("s_waitcnt lgkmcnt(0)"); A(f"s_add_u32 s60, s60, {TAGC}")
    def g1reads(s):
        st = s // 2; win = (st % NS)//2; o0 = ((st % NS) % 2)*STG; b = 112 + 16*(s&1); xa = 96 + 8*(s&1)
        o = [f"ds_read_b128 v[{xa+4*rt}:{xa+4*rt+3}], v{28+3*(s&1)+win} offset:{o0 + rt*2048}" for rt in range(2)]
        for t in range(4):
            o.append(f"ds_read_b64_tr_b16 v[{b+4*t}:{b+4*t+1}], v{16+3*t+win} offset:{o0 + (s&1)*4096}")
            o.append(f"ds_read_b64_tr_b16 v[{b+4*t+2}:{b+4*t+3}], v{16+3*t+win} offset:{o0 + (s&1)*4096 + 512}")
        return o
    A.wait_tag("g0"); A("s_barrier")
    A.stamp("g1s0")
    for o in g1reads(0): A(o)
    dq_ = []
    for s in range(32):
        if s % 2 == 0 and s//2 + G1D < 16: dq_ += g1_ops(s//2 + G1D)
        rd = []
        if s + 1 < 32:
            if (s + 1) % 2 == 0:
                A.wait_tag(f"g{(s+1)//2}"); A("s_barrier")
            rd = g1reads(s + 1)
        A("s_waitcnt lgkmcnt(0)")
        b = 112 + 16*(s&1); xa = 96 + 8*(s&1)
        for t in range(4):
            for rt in range(2):
                d = 64 + (rt*4+t)*4
                c = "0" if s == 0 else f"v[{d}:{d+3}]"
                A(f"v_mfma_f32_16x16x32_bf16 v[{d}:{d+3}], v[{b+4*t}:{b+4*t+3}], v[{xa+4*rt}:{xa+4*rt+3}], {c}")
                k = t*2 + rt
                if k < 5:
                    for _ in range(2):
                        if rd: A(rd.pop(0))
                elif dq_: emit(dq_.pop(0))
        A.stamp(f"g1s{s+1}")
    A.stamp("g1mfma")
    A("s_lshl_b32 s61, s64, 1"); A("s_lshr_b32 s62, s3, 1"); A("s_add_u32 s61, s61, s62"); A("s_lshl_b32 s61, s61, 5")
    A("s_lshl_b32 s62, s59, 1"); A("s_add_u32 s61, s61, s62"); A("s_lshl_b32 s61, s61, 2"); A("s_and_b32 s62, s3, 1"); A("s_lshl_b32 s62, s62, 1")
    A("s_add_u32 s61, s61, s62"); A("s_lshl_b32 s61, s61, 10"); A("s_add_u32 s62, s61, 4096")
    for e in range(16): A(f"v_cvt_pk_bf16_f32 v{96+e}, v{64+2*e}, v{65+2*e}")
    for rt in range(2):
        for sp in range(2):
            r = 96 + rt*8 + sp*4
            A.vmem(f"buffer_store_dwordx4 v[{r}:{r+3}], v2, {WS}, s{61+sp} offen offset:{rt*1024} sc1", "xst")
    A("s_lshl_b32 s61, s64, 4"); A("s_add_u32 s61, s61, s59"); A(f"s_lshl_b32 s61, s61, {FP1}"); A(f"s_add_u32 s61, s61, {F1_OFF}")
    A("v_mov_b32 v8, 0"); A("v_mov_b32 v7, s60")
    A.wait_all(); A("s_barrier")
    A("s_cmp_lg_u32 s3, 0"); A("s_cbranch_scc1 L_f1done")
    if REP:
        A("v_lshlrev_b32 v8, 12, v1"); A("s_mov_b64 exec, 0xff"); A(f"buffer_store_dword v7, v8, {WS}, s61 offen sc1"); A("s_mov_b64 exec, -1")
    else: emit(flag_ops("s61", "v8", "v7", "x"))
    A("L_f1done:")
    A.stamp("g1pub")
    R0 = P.get("SPR0", 448); NR = P.get("SPN", 14)
    if NR:
        A("v_cmp_lt_u32 vcc, 27, v1"); A("s_nop 1"); A("v_cndmask_b32 v8, 0, 1, vcc"); A("v_mul_u32_u24 v9, 28, v8"); A("v_sub_u32 v9, v1, v9")
        A("v_lshlrev_b32 v9, 7, v9"); A("v_mul_u32_u24 v8, 7168, v8"); A("v_add_u32 v8, v8, v9")
        A("s_sub_u32 s61, s57, 28"); A("s_lshl_b32 s61, s61, 2"); A("s_add_u32 s61, s61, s3"); A("s_lshl_b32 s61, s61, 1")
        A("s_lshr_b32 s62, s56, 1"); A("s_mul_i32 s62, s62, 896"); A("s_add_u32 s61, s61, s62"); A(f"s_add_u32 s61, s61, {R0}"); A("s_mul_i32 s61, s61, 7168")
        A("s_mul_i32 s62, s64, 3584"); A("s_add_u32 s61, s61, s62")
        A("s_mov_b32 exec_hi, 0xffffff")
        SPO = P.get("SPO") or [32*i for i in range(NR)]
        for i in range(len(SPO)):
            A(f"buffer_load_dword v{10+(i&1)}, v8, s[{SV}:{SV+3}], s61 offen")
            d_ = (SPO[i+1] - SPO[i] if i + 1 < len(SPO) else 32)*7168
            A(f"s_add_u32 s61, s61, {d_}" if d_ > 0 else f"s_sub_u32 s61, s61, {-d_}")
            A("s_waitcnt vmcnt(1)")
        A("s_mov_b64 exec, -1")
    for pp in P.get("PW2", []):
        A("s_sub_u32 s58, s57, 28"); A("s_lshl_b32 s58, s58, 3"); A("s_add_u32 s58, s58, s56"); A("s_lshl_b32 s58, s58, 2"); A("s_add_u32 s58, s58, s3")
        A("v_lshlrev_b32 v8, 7, v1")
        for h_ in range(2):
            if h_: A("s_add_u32 s58, s58, 128"); A("s_cmp_ge_u32 s58, 224"); A(f"s_cbranch_scc1 L_pw{pp}")
            A("s_and_b32 s61, s58, 3"); A(f"s_add_u32 s62, s61, {pp+1}"); A("s_and_b32 s62, s62, 3"); A("s_lshl_b32 s62, s62, 16"); A("s_lshl_b32 s61, s61, 14"); A("s_add_u32 s61, s61, s62")
            A("s_lshr_b32 s62, s58, 2"); A("s_lshl_b32 s62, s62, 18"); A("s_add_u32 s61, s61, s62"); A(f"s_add_u32 s61, s61, {PART_OFF}"); A("s_add_u32 s62, s61, 0x2000")
            A(f"buffer_load_dword v10, v8, {WS}, s61 offen sc1"); A(f"buffer_load_dword v11, v8, {WS}, s62 offen sc1")
        A(f"L_pw{pp}:")
    A.stamp("g1end")
    A("L_fin:")
    if diag:
        A("s_lshl_b32 s61, s2, 2"); A("s_add_u32 s61, s61, s3"); A("s_lshl_b32 s61, s61, 7"); A(f"s_add_u32 s61, s61, {STAMP_OFF}")
        A("v_mov_b32 v8, 0")
        for i in range(len(A.stnames)):
            A(f"v_mov_b32 v7, s{66+2*i}"); A(f"buffer_store_dword v7, v8, {WS}, s61 offen offset:{4*i}")
    A("L_end:"); A("s_endpgm"); A("L_codeend:")
    A('.section .rodata,"a"'); A(".p2align 6"); A(f".amdhsa_kernel {NAME}")
    A("  .amdhsa_next_free_vgpr 512"); A("  .amdhsa_next_free_sgpr 102"); A("  .amdhsa_accum_offset 256")
    A("  .amdhsa_group_segment_fixed_size 0"); A("  .amdhsa_kernarg_size 72"); A("  .amdhsa_user_sgpr_count 2")
    A("  .amdhsa_user_sgpr_kernarg_segment_ptr 1"); A("  .amdhsa_system_sgpr_workgroup_id_x 1"); A(".end_amdhsa_kernel")
    return A
if __name__ == "__main__":
    import json
    out = sys.argv[1]; diag = len(sys.argv) > 2 and sys.argv[2] == "diag"
    P = json.loads(sys.argv[3]) if len(sys.argv) > 3 else {}
    A = gen(diag, P); open(out, "w").write(A.text())
    if diag: print(A.stnames)
```
